```python
import torch

def _softmax(x, axis=-1):
    return torch.softmax(x, dim=axis)
def _gelu(x):
    return torch.nn.functional.gelu(x, approximate="tanh")
def _silu(x):
    return torch.nn.functional.silu(x)
def _sigmoid(x):
    return torch.sigmoid(x)
def _layernorm(x, axis=-1, eps=1e-5):
    m = x.mean(dim=axis, keepdim=True)
    v = x.var(dim=axis, keepdim=True, unbiased=False)
    return (x - m) / torch.sqrt(v + eps)
def _scatter_add(tgt, idx, src, axis=0):
    return tgt.clone().index_add_(axis, idx, src)
def _segment_sum(src, seg, n):
    out = torch.zeros((n,) + src.shape[1:], dtype=src.dtype)
    return out.index_add_(0, seg, src)
def _pad(x, pw):
    flat = tuple(v for pair in reversed(pw) for v in pair)
    return torch.nn.functional.pad(x, flat)

kernel_name = 'recurrent_scan__spectral_gfnet__geglu_ffn__prompt'

def setup_inputs():

    _w = (lambda a: (lambda t: t.to(torch.bfloat16) if t.is_floating_point() else t)(torch.as_tensor(a)))
    def _A_setup():
        B, S, D = 1, 2048, 640
        Df = D // 2 + 1
        return {
            "x": _w((lambda *s: torch.randn(*s, dtype=torch.bfloat16) * 0.05)(B, S, D)),
            "w_r": _w((lambda *s: torch.randn(*s, dtype=torch.bfloat16) * 0.05)(S, Df) * 0.02),
            "w_i": _w((lambda *s: torch.randn(*s, dtype=torch.bfloat16) * 0.05)(S, Df) * 0.02),
        }
    _A_in = _A_setup()

    def _B_setup():
        B, S, D, F = 1, 2048, 640, 1536
        return {
            "x": _w((lambda *s: torch.randn(*s, dtype=torch.bfloat16) * 0.05)(B, S, D)),
            "w_gate": _w((lambda *s: torch.randn(*s, dtype=torch.bfloat16) * 0.05)(D, F)),
            "w_up": _w((lambda *s: torch.randn(*s, dtype=torch.bfloat16) * 0.05)(D, F)),
            "w_down": _w((lambda *s: torch.randn(*s, dtype=torch.bfloat16) * 0.05)(F, D)),
        }
    _B_in = _B_setup()

    return {
        "A_x": _A_in["x"],
        "A_w_r": _A_in["w_r"],
        "A_w_i": _A_in["w_i"],
        "B_x": _B_in["x"],
        "B_w_gate": _B_in["w_gate"],
        "B_w_up": _B_in["w_up"],
        "B_w_down": _B_in["w_down"],
    }

def reference(A_x, A_w_r, A_w_i, B_x, B_w_gate, B_w_up, B_w_down):
    def _A_ref(x, w_r, w_i):
        B, S, D = x.shape
        X = (lambda x, axes=(-2,-1): torch.fft.rfft2(x.float(), dim=axes))(x, axes=(-2, -1))
        W = w_r + 1j * w_i
        X = X * W
        y = (lambda x, s, axes=(-2,-1): torch.fft.irfft2(x, s=s, dim=axes).to(torch.bfloat16))(X, (S, D), axes=(-2, -1))
        return y

    def _B_ref(x, w_gate, w_up, w_down):
        return (_gelu(x @ w_gate) * (x @ w_up)) @ w_down

    x = A_x
    xn = _layernorm(x, axis=-1)
    s = _A_ref(xn, A_w_r, A_w_i)
    g = _silu(_B_ref(xn, B_w_gate, B_w_up, B_w_down))
    return x + s * g
```

```python
from common import *

def wave_lane(a, V, Sg):
    sW = Sg(); vL = V()
    a(f"v_lshrrev_b32 {vL}, 6, v0")
    a(f"v_readfirstlane_b32 {sW}, {vL}")
    a(f"v_and_b32 {vL}, 63, v0")
    return sW, vL

def dma(a, m0val, voff, srd_, soff, imm=0, flag=""):
    a(m0val)
    a(f"buffer_load_dwordx4 {voff}, {srd_}, {soff} offen" + (f" offset:{imm}" if imm else "") + (f" {flag}" if flag else "") + " lds")

def wave_sum2(a, x, y):
    for d in ("row_shr:1", "row_shr:2", "row_shr:4", "row_shr:8"):
        for r in (x, y): a(f"v_add_f32_dpp {r}, {r}, {r} {d} row_mask:0xf bank_mask:0xf bound_ctrl:1")
    for r in (x, y): a(f"v_add_f32_dpp {r}, {r}, {r} row_bcast:15 row_mask:0xa bank_mask:0xf")
    for r in (x, y): a(f"v_add_f32_dpp {r}, {r}, {r} row_bcast:31 row_mask:0xc bank_mask:0xf")

L_WT, L_CS, L_WD, L_ROW, L_ZS = 0, 16384, 32768, 40960, 51456

def role_aux1(a, V, Sg, sid, sW, vL, rWS, st=""):
    rX, rWR, rWI, rWD, rWC = Sg(4), Sg(4), Sg(4), Sg(4), Sg(4)
    s0, s1, s2_, s3_, sJ2, sJQ, sKS, sNR = [Sg() for _ in range(8)]
    mk_srd(a, rX, P_X, 2621440)
    a(f"s_and_b32 {sJQ}, {sid}, 7")
    a(f"s_lshr_b32 {sJ2}, {sid}, 3")
    xa, xb = V(6, 2), V(6, 2)
    vT0, vT1, vT2, vT3 = V(), V(), V(), V()
    v16 = V()
    a(f"s_lshl_b32 {s0}, {sJQ}, 2\ns_add_u32 {s0}, {s0}, {sW}\ns_lshl_b32 {s0}, {s0}, 5\ns_add_u32 {s0}, {s0}, {sJ2}")
    a(f"s_mul_i32 {s0}, {s0}, 1280\ns_add_u32 {s1}, {s0}, {1024*1280}")
    a(f"v_lshlrev_b32 {v16}, 4, {vL}\nv_lshlrev_b32 {vT1}, 2, {vL}")
    a(f"buffer_load_dwordx4 {xa[0:4]}, {v16}, {rX}, {s0} offen")
    a(f"buffer_load_dwordx4 {xb[0:4]}, {v16}, {rX}, {s1} offen")
    a(f"buffer_load_dword {xa[4]}, {vT1}, {rX}, {s0} offen offset:1024")
    a(f"buffer_load_dword {xb[4]}, {vT1}, {rX}, {s1} offen offset:1024")
    mk_srd(a, rWR, P_WR, 1314816); mk_srd(a, rWI, P_WI, 1314816)
    for i in range(128): assert (i*43) >> 8 == i//6
    a(f"s_and_b32 {s0}, {sid}, 28\ns_add_u32 {s0}, {s0}, {sW}\ns_lshl_b32 {s0}, {s0}, 2\ns_and_b32 {s1}, {sid}, 3\ns_add_u32 {s0}, {s0}, {s1}")
    a(f"s_lshl_b32 {s0}, {s0}, 4\ns_add_u32 {s0}, {s0}, 2047")
    a(f"s_lshr_b32 {s1}, {sid}, 5\ns_mul_i32 {s1}, {s1}, 80\ns_add_u32 {s1}, {s1}, 2")
    a(f"s_lshl_b32 {s2_}, {sW}, 11")
    for i in range(2):
        a(f"v_add_u32 {vT0}, {64*i}, {vL}")
        a(f"v_mul_u32_u24 {vT1}, 43, {vT0}\nv_lshrrev_b32 {vT1}, 8, {vT1}")
        a(f"v_mul_u32_u24 {vT2}, 6, {vT1}\nv_sub_u32 {vT0}, {vT0}, {vT2}")
        a(f"v_add_u32 {vT1}, {s0}, {vT1}\nv_and_b32 {vT1}, 2047, {vT1}")
        a(f"v_mul_u32_u24 {vT1}, 642, {vT1}\nv_add_u32 {vT1}, {s1}, {vT1}\nv_and_b32 {vT1}, -16, {vT1}")
        a(f"v_lshl_add_u32 {vT0}, {vT0}, 4, {vT1}")
        if i == 1: set_exec(a, (1 << 38) - 1)
        dma(a, f"s_add_u32 m0, {s2_}, {L_WT + i*1024}", vT0, rWR, 0)
        dma(a, f"s_add_u32 m0, {s2_}, {L_WT + 8192 + i*1024}", vT0, rWI, 0)
    set_exec(a, FULL)
    a(f"s_sub_u32 {s0}, {sid}, 16\ns_cmp_lt_u32 {sid}, 240\ns_cselect_b32 {s0}, {sid}, {s0}")
    for i in range(240): assert (i*1366) >> 16 == i//48
    a(f"s_mul_i32 {sNR}, {s0}, 1366\ns_lshr_b32 {sNR}, {sNR}, 16\ns_mul_i32 {s1}, {sNR}, 48\ns_sub_u32 {sKS}, {s0}, {s1}")
    a(f"s_cmp_lt_u32 {sKS}, 24\ns_cselect_b64 {rWC[0:2]}, s[{P_WG}:{P_WG+1}], s[{P_WU}:{P_WU+1}]\ns_cselect_b32 {s1}, 0, 24")
    a(f"s_mov_b32 {rWC[2]}, 1966080\ns_mov_b32 {rWC[3]}, 0x00020000")
    a(f"s_sub_u32 {s1}, {sKS}, {s1}\ns_lshl_b32 {s1}, {s1}, 7")
    a(f"s_lshl_b32 {s0}, {sNR}, 2\ns_add_u32 {s0}, {s0}, {sW}\ns_mul_i32 {s0}, {s0}, {32*3072}\ns_add_u32 {s0}, {s0}, {s1}")
    a(f"v_lshrrev_b32 {vT0}, 3, {vL}\nv_mul_u32_u24 {vT0}, 3072, {vT0}\nv_and_b32 {vT1}, 0x70, {v16}\nv_add_u32 {vT0}, {vT0}, {vT1}")
    a(f"s_lshl_b32 {s3_}, {sW}, 12")
    for i in range(4):
        dma(a, f"s_add_u32 m0, {s3_}, {L_CS + i*1024}", vT0, rWC, s0)
        if i < 3: a(f"s_add_u32 {s0}, {s0}, {8*3072}")
    mk_srd(a, rWD, P_WD, 1966080)
    a(f"s_lshl_b32 {s0}, {sKS}, 2\ns_add_u32 {s0}, {s0}, {sW}\ns_mul_i32 {s0}, {s0}, {8*1280}\ns_lshl_b32 {s1}, {sNR}, 8\ns_add_u32 {s0}, {s0}, {s1}")
    vG, vI = V(), V()
    a(f"v_lshrrev_b32 {vG}, 4, {vL}\nv_and_b32 {vI}, 15, {vL}")
    a(f"v_mul_u32_u24 {vT0}, 1280, {vG}\nv_lshl_add_u32 {vT0}, {vI}, 4, {vT0}")
    for i in range(2):
        dma(a, f"s_add_u32 m0, {s2_}, {L_WD + i*1024}", vT0, rWD, s0)
        if i == 0: a(f"s_add_u32 {s0}, {s0}, {4*1280}")
    stamp(a, "issued")
    fI, fG = V(), V()
    a(f"v_cvt_f32_u32 {fI}, {vI}\nv_cvt_f32_u32 {fG}, {vG}")
    C20, S20 = V(4), V(4)
    ang, step = V(), V()
    a(f"v_mul_f32 {step}, {f32(-1/20)}, {fI}\nv_mul_f32 {ang}, {f32(8.0)}, {fG}\nv_mul_f32 {ang}, {ang}, {step}")
    for q in range(4):
        a(f"v_cos_f32 {vT0}, {ang}\nv_sin_f32 {vT2}, {ang}\nv_add_f32 {ang}, {ang}, {step}")
        a(f"v_cos_f32 {vT1}, {ang}\nv_sin_f32 {vT3}, {ang}\nv_add_f32 {ang}, {ang}, {step}")
        cvtpk(a, C20[q], vT0, vT1); cvtpk(a, S20[q], vT2, vT3)
    set_exec(a, lanemask(lambda l: l >= 32))
    for r in (C20[2], C20[3], S20[2], S20[3]): a(f"v_mov_b32 {r}, 0")
    set_exec(a, lanemask(lambda l: l >= 48))
    for r in (C20[0], C20[1], S20[0], S20[1]): a(f"v_mov_b32 {r}, 0")
    set_exec(a, FULL)
    C0, S0, nS0, C1, S1, nC1 = [V(4) for _ in range(6)]
    a(f"v_mul_f32 {step}, {f32(1/32)}, {fI}\nv_mul_f32 {ang}, 4.0, {fG}\nv_mul_f32 {ang}, {ang}, {step}")
    for q in range(2):
        a(f"v_cos_f32 {vT0}, {ang}\nv_sin_f32 {vT2}, {ang}\nv_add_f32 {ang}, {ang}, {step}")
        a(f"v_cos_f32 {vT1}, {ang}\nv_sin_f32 {vT3}, {ang}\nv_add_f32 {ang}, {ang}, {step}")
        cvtpk(a, C0[q], vT0, vT1); cvtpk(a, S0[q], vT2, vT3)
    a(f"v_and_b32 {vT0}, 1, {vI}\nv_mul_u32_u24 {vT0}, 0x8000, {vT0}\nv_lshl_or_b32 {vT0}, {vT0}, 16, {vT0}")
    for q in range(2):
        a(f"v_xor_b32 {C0[2+q]}, {C0[q]}, {vT0}\nv_xor_b32 {S0[2+q]}, {S0[q]}, {vT0}")
    for q in range(4):
        a(f"v_xor_b32 {nS0[q]}, 0x80008000, {S0[q]}")
        a(f"v_xor_b32 {C1[q]}, 0x80000000, {C0[q]}")
        a(f"v_xor_b32 {S1[q]}, 0x80000000, {S0[q]}")
        a(f"v_xor_b32 {nC1[q]}, 0x00008000, {C0[q]}")
    twr, twi = V(16), V(16)
    a(f"s_lshl_b32 {s0}, {sJQ}, 1\ns_and_b32 {s1}, {sW}, 1\ns_add_u32 {s0}, {s0}, {s1}\ns_lshl_b32 {s0}, {s0}, 6\ns_add_u32 {s0}, {s0}, {sJ2}")
    a(f"s_lshr_b32 {s1}, {sW}, 1\ns_mul_i32 {s0}, {s0}, {s1}\ns_mul_i32 {s1}, {s1}, {f32(-32/2048)}")
    a(f"v_cvt_f32_u32 {vT0}, {s0}\nv_mul_f32 {vT0}, {f32(-1/2048)}, {vT0}")
    a(f"v_mul_f32 {step}, {f32(-1/640)}, {fI}\nv_mul_f32 {ang}, 4.0, {fG}\nv_fma_f32 {ang}, {ang}, {step}, {vT0}")
    a(f"v_mul_f32 {vT1}, {f32(12.0)}, {step}")
    for m in range(8):
        a(f"v_add_f32 {vT0}, {s1}, {ang}")
        a(f"v_cos_f32 {twr[m]}, {ang}\nv_sin_f32 {twi[m]}, {ang}\nv_cos_f32 {twr[8+m]}, {vT0}\nv_sin_f32 {twi[8+m]}, {vT0}")
        if m < 7: a(f"v_add_f32 {ang}, {ang}, {step}")
        if m == 3: a(f"v_add_f32 {ang}, {ang}, {vT1}")
    da, db = V(10), V(10)
    ma, mb = V(2, 2), V(2, 2)
    stamp(a, "trig")
    a("s_waitcnt vmcnt(10)")
    stamp(a, "x")
    for x, d in ((xa, da), (xb, db)):
        for k in range(5):
            a(f"v_lshlrev_b32 {d[2*k]}, 16, {x[k]}\nv_and_b32 {d[2*k+1]}, 0xffff0000, {x[k]}")
    a(f"v_add_f32 {ma[0]}, {da[0]}, {da[1]}\nv_add_f32 {mb[0]}, {db[0]}, {db[1]}")
    for k in range(2, 10): a(f"v_add_f32 {ma[0]}, {ma[0]}, {da[k]}\nv_add_f32 {mb[0]}, {mb[0]}, {db[k]}")
    wave_sum2(a, ma[0], mb[0])
    a(f"v_mul_f32 {ma[0]}, {f32(1/640)}, {ma[0]}\nv_mul_f32 {mb[0]}, {f32(1/640)}, {mb[0]}")
    a(f"v_readlane_b32 {s0}, {ma[0]}, 63\nv_readlane_b32 {s1}, {mb[0]}, 63")
    for k in range(10): a(f"v_subrev_f32 {da[k]}, {s0}, {da[k]}\nv_subrev_f32 {db[k]}, {s1}, {db[k]}")
    a(f"v_mul_f32 {ma[1]}, {da[0]}, {da[0]}\nv_mul_f32 {mb[1]}, {db[0]}, {db[0]}")
    for k in range(1, 10): a(f"v_fmac_f32 {ma[1]}, {da[k]}, {da[k]}\nv_fmac_f32 {mb[1]}, {db[k]}, {db[k]}")
    wave_sum2(a, ma[1], mb[1])
    a(f"v_mov_b32 {vT2}, {f32(1e-5)}")
    a(f"v_fmamk_f32 {ma[1]}, {ma[1]}, {f32(1/640)}, {vT2}\nv_fmamk_f32 {mb[1]}, {mb[1]}, {f32(1/640)}, {vT2}")
    a(f"v_rsq_f32 {vT0}, {ma[1]}\nv_rsq_f32 {vT1}, {mb[1]}")
    a(f"s_lshl_b32 {s2_}, {sJQ}, 5\ns_add_u32 {s2_}, {s2_}, {sJ2}")
    a(f"s_lshl_b32 {s3_}, {s2_}, 3\ns_add_u32 {s3_}, {s3_}, {sW}\ns_lshl_b32 {s3_}, {s3_}, 3\ns_add_u32 {s3_}, {s3_}, {WS_ST}")
    a(f"v_readlane_b32 {s0}, {vT0}, 63\nv_readlane_b32 {s1}, {vT1}, 63")
    set_exec(a, 1 << 63)
    a(f"buffer_store_dwordx2 {ma}, off, {rWS}, {s3_} {st}")
    a(f"buffer_store_dwordx2 {mb}, off, {rWS}, {s3_} offset:32 {st}")
    set_exec(a, FULL)
    for k in range(10): a(f"v_mul_f32 {da[k]}, {s0}, {da[k]}")
    for k in range(5):
        a(f"v_fma_f32 {vT0}, {db[2*k]}, {s1}, {da[2*k]}\nv_fma_f32 {vT1}, {db[2*k+1]}, {s1}, {da[2*k+1]}")
        a(f"v_fma_f32 {vT2}, -{db[2*k]}, {s1}, {da[2*k]}\nv_fma_f32 {vT3}, -{db[2*k+1]}, {s1}, {da[2*k+1]}")
        cvtpk(a, xa[k], vT0, vT1); cvtpk(a, xb[k], vT2, vT3)
    a(f"s_mul_i32 {s0}, {sW}, 1280")
    a(f"v_add_u32 {vT0}, {s0}, {v16}\nv_lshl_add_u32 {vT1}, {vL}, 2, {s0}")
    a(f"ds_write_b128 {vT0}, {xa[0:4]} offset:{L_ROW}\nds_write_b128 {vT0}, {xb[0:4]} offset:{L_ROW+5120}")
    a(f"ds_write_b32 {vT1}, {xa[4]} offset:{L_ROW+1024}\nds_write_b32 {vT1}, {xb[4]} offset:{L_ROW+5120+1024}")
    vTR = V()
    vR, vC8 = V(), V()
    a(f"v_bfe_u32 {vR}, {vL}, 2, 2\nv_and_b32 {vC8}, 3, {vL}\nv_lshlrev_b32 {vC8}, 3, {vC8}")
    a(f"s_mul_i32 {s0}, {sW}, 2560")
    a(f"v_lshl_add_u32 {vTR}, {vR}, 6, {vC8}\nv_add_u32 {vTR}, {s0}, {vTR}")
    a(f"v_lshlrev_b32 {vT0}, 1, {vG}\nv_add_u32 {vT1}, 1, {vT0}\nv_min_u32 {vT0}, 4, {vT0}\nv_min_u32 {vT1}, 4, {vT1}")
    a(f"v_lshl_add_u32 {vT0}, {vT0}, 8, {vTR}\nv_lshl_add_u32 {vT1}, {vT1}, 8, {vTR}")
    stamp(a, "ln")
    a("s_waitcnt vmcnt(0) lgkmcnt(0)\ns_barrier")
    stamp(a, "bar1")
    A1 = V(16)
    for row in range(2):
        for mt in range(2):
            f = A1[8*row+4*mt: 8*row+4*mt+4]
            a(f"ds_read_b64_tr_b16 {f[0:2]}, {vT0} offset:{L_ROW + row*1280 + mt*32}")
            a(f"ds_read_b64_tr_b16 {f[2:4]}, {vT1} offset:{L_ROW + row*1280 + mt*32}")
    Tr, Ti = V(16), V(16)
    for row in range(2):
        for mt in range(2):
            k = 8*row + 4*mt
            a(f"s_waitcnt lgkmcnt({6 - 4*row - 2*mt})")
            mfma16(a, Tr[k:k+4], A1[k:k+4], C20, 0)
            mfma16(a, Ti[k:k+4], A1[k:k+4], S20, 0)
    Br, Bi = V(8), V(8)
    Xr, Xi = V(16), V(16)
    for row in range(2):
        for m in range(0, 8, 2):
            k = 8*row + m
            cmul(a, Tr[k], Ti[k], twr[k], twi[k], vT0, vT2)
            cmul(a, Tr[k+1], Ti[k+1], twr[k+1], twi[k+1], vT1, vT3)
            cvtpk(a, Br[4*row + m//2], vT0, vT1); cvtpk(a, Bi[4*row + m//2], vT2, vT3)
        br, bi = Br[4*row:4*row+4], Bi[4*row:4*row+4]
        k = 8*row
        mfma16(a, Xr[k:k+4], C0, br, 0);        mfma16(a, Xi[k:k+4], C0, bi, 0)
        mfma16(a, Xr[k+4:k+8], C1, br, 0);      mfma16(a, Xi[k+4:k+8], nC1, bi, 0)
        mfma16(a, Xr[k:k+4], S0, bi, Xr[k:k+4]);          mfma16(a, Xi[k:k+4], nS0, br, Xi[k:k+4])
        mfma16(a, Xr[k+4:k+8], S1, bi, Xr[k+4:k+8]);      mfma16(a, Xi[k+4:k+8], S1, br, Xi[k+4:k+8])
    vA0, vA1 = V(), V()
    a(f"s_lshr_b32 {s0}, {sW}, 1\ns_mul_i32 {s0}, {s0}, 5120\ns_and_b32 {s1}, {sW}, 1\ns_lshl_b32 {s1}, {s1}, 2\ns_add_u32 {s0}, {s0}, {s1}")
    a(f"s_add_u32 {s1}, {s0}, {L_ZS + 259*16}\ns_add_u32 {s0}, {s0}, {L_ZS - 16}")
    a(f"v_mul_u32_u24 {vT0}, 80, {vG}\nv_add_lshl_u32 {vT0}, {vT0}, {vI}, 4")
    a(f"v_add_u32 {vA0}, {s0}, {vT0}\nv_sub_u32 {vA1}, {s1}, {vT0}")
    set_exec(a, 1)
    for r in (Xr[4], Xi[4], Xr[12], Xi[12]): a(f"v_mul_f32 {r}, 0.5, {r}")
    for mt in range(2):
        for r in range(4):
            if mt == 0: ok = lambda l: (l & 15) <= 10 and not (r == 0 and l == 0)
            else:       ok = lambda l: 1 <= (l & 15) <= 9 or (r == 0 and l == 0)
            if r < 2: set_exec(a, lanemask(ok))
            k = 4*mt + r
            t0, t1 = (vT0, vT1) if r & 1 else (vT2, vT3)
            cvtpk(a, t0, Xr[k], Xr[8+k]); cvtpk(a, t1, Xi[k], Xi[8+k])
            o = (r if mt == 0 else 3 - r) * 80
            a(f"ds_write2_b32 {vA0 if mt == 0 else vA1}, {t0}, {t1} offset0:{o} offset1:{o+2}")
    set_exec(a, FULL)
    ones = da[0:4]; fr = Tr; cs = da[4:8]
    for q in range(4): a(f"v_mov_b32 {ones[q]}, 0x3f803f80")
    a(f"v_lshl_add_u32 {vT0}, {vG}, 3, {vR}\nv_lshl_add_u32 {vT0}, {vT0}, 7, {vC8}\ns_lshl_b32 {s0}, {sW}, 5\nv_add_u32 {vT0}, {s0}, {vT0}")
    for ks in range(4):
        for n in range(2):
            a(f"ds_read_b64_tr_b16 {fr[4*ks+2*n:4*ks+2*n+2]}, {vT0} offset:{L_CS + ks*4096 + n*512}")
    wd = Ti[0:8]
    a(f"v_lshrrev_b32 {vT1}, 1, {vG}\nv_lshlrev_b32 {vT1}, 2, {vT1}\nv_and_b32 {vT2}, 1, {vG}\nv_add_u32 {vT1}, {vT1}, {vT2}")
    a(f"v_lshl_add_u32 {vT1}, {vT1}, 2, {vR}\nv_lshl_add_u32 {vT1}, {vT1}, 8, {vC8}\ns_lshl_b32 {s0}, {sW}, 6\nv_add_u32 {vT1}, {s0}, {vT1}")
    for f in range(2):
        for n in range(2):
            a(f"ds_read_b64_tr_b16 {wd[4*f+2*n:4*f+2*n+2]}, {vT1} offset:{L_WD + f*32 + n*2048}")
    a("s_waitcnt lgkmcnt(0)\ns_barrier")
    stamp(a, "fft")
    zz = twr[0:12]
    a(f"v_lshlrev_b32 {vT2}, 4, v0")
    a(f"ds_read_b128 {zz[0:4]}, {vT2} offset:{L_ZS}\nds_read_b128 {zz[4:8]}, {vT2} offset:{L_ZS+4096}\nds_read_b128 {zz[8:12]}, {vT2} offset:{L_ZS+8192}")
    for ks in range(4): mfma16(a, cs, ones, fr[4*ks:4*ks+4], cs if ks else 0)
    a(f"s_mul_i32 {s0}, {sKS}, 40\ns_lshl_b32 {s1}, {sNR}, 3\ns_add_u32 {s0}, {s0}, {s1}\ns_lshl_b32 {s1}, {sW}, 1\ns_add_u32 {s0}, {s0}, {s1}")
    a(f"s_lshl_b32 {s0}, {s0}, 10\ns_add_u32 {s0}, {s0}, {WS_WDP}")
    a(f"buffer_store_dwordx4 {wd[0:4]}, {v16}, {rWS}, {s0} offen {st}")
    a(f"buffer_store_dwordx4 {wd[4:8]}, {v16}, {rWS}, {s0} offen offset:1024 {st}")
    a(f"s_mul_i32 {s0}, {s2_}, 10240\ns_add_u32 {s0}, {s0}, {WS_Z}\ns_add_u32 {s1}, {s0}, 4096\ns_add_u32 {s3_}, {s0}, 8192")
    a("s_waitcnt lgkmcnt(0)")
    a(f"buffer_store_dwordx4 {zz[0:4]}, {vT2}, {rWS}, {s0} offen {st}")
    a(f"buffer_store_dwordx4 {zz[4:8]}, {vT2}, {rWS}, {s1} offen {st}")
    L = a.label("zskip")
    a(f"s_cmp_ge_u32 {sW}, 2\ns_cbranch_scc1 {L}")
    a(f"buffer_store_dwordx4 {zz[8:12]}, {vT2}, {rWS}, {s3_} offen {st}")
    a(f"{L}:")
    a(f"s_mul_i32 {s0}, {sNR}, 12288\ns_lshl_b32 {s1}, {sKS}, 8\ns_add_u32 {s0}, {s0}, {s1}\ns_lshl_b32 {s1}, {sW}, 6\ns_add_u32 {s0}, {s0}, {s1}\ns_add_u32 {s0}, {s0}, {WS_CS}")
    a(f"v_lshlrev_b32 {vT0}, 2, {vL}")
    set_exec(a, 0xffff)
    a(f"buffer_store_dword {cs[0]}, {vT0}, {rWS}, {s0} offen {st}")
    set_exec(a, FULL)
    stamp(a, "zst")
    wre, wim = twi[0:4], twi[4:8]
    vM, vP = V(), V()
    sPair = Sg(2)
    a(f"v_and_b32 {vM}, 7, {vL}\nv_bfe_u32 {vP}, {vL}, 3, 1")
    a(f"s_lshr_b32 {s0}, {sid}, 5\ns_mul_i32 {s3_}, {s0}, 40\ns_lshl_b32 {s0}, {s3_}, 12\ns_and_b32 {s1}, {sid}, 31\ns_lshl_b32 {s1}, {s1}, 7")
    a(f"s_add_u32 {s0}, {s0}, {s1}\ns_add_u32 {s0}, {s0}, {WS_WT}\ns_sub_u32 {s3_}, 319, {s3_}")
    Lend = a.label("wtend")
    for it in range(3):
        if it == 2: a(f"s_cmp_ge_u32 {sW}, 2\ns_cbranch_scc1 {Lend}")
        a(f"v_lshrrev_b32 {vT0}, 4, v0")
        if it: a(f"v_add_u32 {vT0}, {16*it}, {vT0}")
        a(f"v_subrev_u32 {vT1}, 10, {vT0}\nv_subrev_u32 {vT2}, 30, {vT0}\nv_min_u32 {vT1}, {vT1}, {vT2}")
        a(f"v_cmp_gt_u32 vcc, 9, {vT1}\nv_cmp_eq_u32 {sPair}, {s3_}, {vT0}\ns_or_b64 vcc, vcc, {sPair}")
        a(f"v_sub_u32 {vT2}, 0, {vP}\nv_cndmask_b32 {vT1}, {vP}, {vT2}, vcc")
        a(f"v_lshl_add_u32 {vT1}, {vM}, 1, {vT1}\nv_add_u32 {vT1}, 1, {vT1}")
        a(f"v_and_b32 {vT2}, 7, {vT1}\nv_add_u32 {vT2}, {vT2}, {vT0}\nv_mul_u32_u24 {vT1}, 48, {vT1}\nv_add_lshl_u32 {vT1}, {vT1}, {vT2}, 1")
        for mm in range(4):
            a(f"ds_read_u16 {wre[mm]}, {vT1} offset:{L_WT + mm*2048}\nds_read_u16 {wim[mm]}, {vT1} offset:{L_WT + 8192 + mm*2048}")
        a(f"v_mul_u32_u24 {vT2}, 320, {vP}\nv_add_u32 {vT2}, {vT2}, {vT0}\nv_lshlrev_b32 {vT2}, 8, {vT2}\nv_add_lshl_u32 {vT2}, {vT2}, {vM}, 4")
        a("s_waitcnt lgkmcnt(0)")
        for mm in range(4): a(f"v_lshl_or_b32 {wim[mm]}, {wim[mm]}, 16, {wre[mm]}")
        a(f"buffer_store_dwordx4 {wim}, {vT2}, {rWS}, {s0} offen {st}")
    a(f"{Lend}:")
    stamp(a, "wt")


def c_consts(a, V, vL):
    C, S_, nS = V(8), V(8), V(8)
    twr, twi = V(16), V(16)
    m = V.mark()
    fL, fH, ang, step, t0, t1, t2, t3, s4 = [V() for _ in range(9)]
    a(f"v_and_b32 {t0}, 31, {vL}\nv_cvt_f32_u32 {fL}, {t0}\nv_lshrrev_b32 {t1}, 5, {vL}\nv_cvt_f32_u32 {fH}, {t1}")
    a(f"v_mul_f32 {fH}, 4.0, {fH}")
    a(f"v_mul_f32 {step}, {f32(1/32)}, {fL}\nv_mul_f32 {ang}, {fH}, {step}\nv_mul_f32 {s4}, 4.0, {step}")
    for q in range(4):
        a(f"v_cos_f32 {t0}, {ang}\nv_sin_f32 {t2}, {ang}\nv_add_f32 {ang}, {ang}, {step}")
        a(f"v_cos_f32 {t1}, {ang}\nv_sin_f32 {t3}, {ang}\nv_add_f32 {ang}, {ang}, {step}")
        if q == 1: a(f"v_add_f32 {ang}, {ang}, {s4}")
        cvtpk(a, C[q], t0, t1); cvtpk(a, S_[q], t2, t3)
    a(f"v_and_b32 {t0}, 1, {vL}\nv_mul_u32_u24 {t0}, 0x8000, {t0}\nv_lshl_or_b32 {t0}, {t0}, 16, {t0}")
    for q in range(4): a(f"v_xor_b32 {C[4+q]}, {C[q]}, {t0}\nv_xor_b32 {S_[4+q]}, {S_[q]}, {t0}")
    for q in range(8): a(f"v_xor_b32 {nS[q]}, 0x80008000, {S_[q]}")
    a(f"v_mul_f32 {step}, {f32(-1/1024)}, {fL}\nv_mul_f32 {ang}, {fH}, {step}\nv_mul_f32 {s4}, {f32(5.0)}, {step}")
    for r in range(16):
        a(f"v_cos_f32 {twr[r]}, {ang}\nv_sin_f32 {twi[r]}, {ang}")
        if r < 15: a(f"v_add_f32 {ang}, {ang}, {s4 if r & 3 == 3 else step}")
    V.reset(m)
    return C, S_, nS, twr, twi

def role_c(a, V, Sg, sid, sW, vL, rWS, st="", ld="", pre=None):
    s0, s1, sUB = Sg(), Sg(), Sg()
    vT0, vT1, vT2, vT3 = V(), V(), V(), V()
    consts = c_consts(a, V, vL) if pre else None
    if pre: pre()
    a(f"s_and_b32 {s0}, {sid}, 7\ns_mul_i32 {s0}, {s0}, 20\ns_lshr_b32 {s1}, {sid}, 3\ns_add_u32 {sUB}, {s0}, {s1}")
    vSW = V()
    a(f"v_lshrrev_b32 {vT0}, 2, {vL}\nv_lshrrev_b32 {vT1}, 3, {vL}\nv_xor_b32 {vT1}, {vT1}, {vL}\nv_and_b32 {vT1}, 3, {vT1}")
    a(f"v_lshlrev_b32 {vSW}, 4, {vT1}")
    a(f"v_mul_u32_u24 {vT0}, 10240, {vT0}\nv_add_u32 {vT0}, {vT0}, {vSW}")
    a(f"s_mul_i32 {s0}, {sW}, {64*10240}\ns_lshl_b32 {s1}, {sUB}, 6\ns_add_u32 {s0}, {s0}, {s1}\ns_add_u32 {s0}, {s0}, {WS_Z}")
    a(f"s_lshl_b32 {s1}, {sW}, 12")
    for i in range(4):
        dma(a, f"s_add_u32 m0, {s1}, {i*1024}", vT0, rWS, s0, flag=ld)
        if i < 3: a(f"s_add_u32 {s0}, {s0}, {16*10240}")
    W = V(16, 4); v16 = V()
    a(f"v_lshlrev_b32 {v16}, 4, {vL}")
    a(f"s_lshl_b32 {s0}, {sUB}, 2\ns_add_u32 {s0}, {s0}, {sW}\ns_lshl_b32 {s0}, {s0}, 12\ns_add_u32 {s0}, {s0}, {WS_WT}")
    for i in range(4): a(f"buffer_load_dwordx4 {W[4*i:4*i+4]}, {v16}, {rWS}, {s0} offen offset:{1024*i} {ld}")
    C, S_, nS, twr, twi = consts if consts else c_consts(a, V, vL)
    vA = V()
    a(f"v_lshrrev_b32 {vT0}, 1, {vL}\nv_xor_b32 {vT0}, {sW}, {vT0}\nv_and_b32 {vT0}, 3, {vT0}\nv_lshlrev_b32 {vT0}, 4, {vT0}")
    a(f"v_lshl_add_u32 {vA}, {vL}, 6, {vT0}\nv_add_u32 {vT1}, 8, {vA}")
    Pr, Pi = V(8), V(8)
    Dr, Di = V(16), V(16)
    stamp(a, "setup")
    a("s_waitcnt vmcnt(4)\ns_barrier")
    stamp(a, "z")
    for s in range(2):
        a(f"ds_read2st64_b64 {Pr[4*s:4*s+4]}, {vA} offset0:{16*s} offset1:{16*s+8}")
        a(f"ds_read2st64_b64 {Pi[4*s:4*s+4]}, {vT1} offset0:{16*s} offset1:{16*s+8}")
    def stage(dataA, inv):
        Sp, Sm = (nS, S_) if inv else (S_, nS)
        def mm(d, dat, mat, c):
            if dataA: mfma32(a, d, dat, mat, c)
            else: mfma32(a, d, mat, dat, c)
        for s in range(2):
            sl = slice(4*s, 4*s+4)
            mm(Dr, Pr[sl], C[sl], Dr if s else 0); mm(Di, Pi[sl], C[sl], Di if s else 0)
            mm(Dr, Pi[sl], Sp[sl], Dr);            mm(Di, Pr[sl], Sm[sl], Di)
    def mulpack(getf, conj):
        for r in range(0, 16, 2):
            f0 = getf(r); cmul(a, Dr[r], Di[r], f0[0], f0[1], vT0, vT2, conj)
            f1 = getf(r+1); cmul(a, Dr[r+1], Di[r+1], f1[0], f1[1], vT1, vT3, conj)
            cvtpk(a, Pr[r//2], vT0, vT1); cvtpk(a, Pi[r//2], vT2, vT3)
    a("s_waitcnt lgkmcnt(0)")
    stage(True, False)
    mulpack(lambda r: (twr[r], twi[r]), False)
    stage(False, False)
    wr = V(16)
    a("s_waitcnt vmcnt(0)")
    for r in range(16): a(f"v_lshlrev_b32 {wr[r]}, 16, {W[r]}\nv_and_b32 {W[r]}, 0xffff0000, {W[r]}")
    mulpack(lambda r: (wr[r], W[r]), False)
    stage(True, True)
    mulpack(lambda r: (twr[r], twi[r]), True)
    stage(False, True)
    stamp(a, "fft")
    for R4 in range(4):
        o = W[4*R4:4*R4+4]
        cvtpk(a, o[0], Dr[4*R4], Dr[4*R4+1]); cvtpk(a, o[1], Dr[4*R4+2], Dr[4*R4+3])
        cvtpk(a, o[2], Di[4*R4], Di[4*R4+1]); cvtpk(a, o[3], Di[4*R4+2], Di[4*R4+3])
        a(f"ds_write_b128 {vA}, {o} offset:{16384 + R4*4096}")
    a(f"v_and_b32 {vT0}, -4, v0\nv_lshl_add_u32 {vT0}, {vT0}, 4, {vSW}\nv_lshlrev_b32 {vT1}, 4, v0")
    a(f"s_lshl_b32 {s0}, {sUB}, 14\ns_add_u32 {s0}, {s0}, {WS_Y}")
    a("s_waitcnt lgkmcnt(0)\ns_barrier")
    for i in range(4): a(f"ds_read_b128 {W[4*i:4*i+4]}, {vT0} offset:{16384 + i*4096}")
    for i in range(4):
        a(f"s_waitcnt lgkmcnt({3-i})")
        a(f"buffer_store_dwordx4 {W[4*i:4*i+4]}, {vT1}, {rWS}, {s0} offen {st}")
        if i < 3: a(f"s_add_u32 {s0}, {s0}, 4096")


def role_r2(a, V, Sg, sid, sW, vL, rWS, st="", ld="", pre=None, LB=0):
    s0, s1, sT, sH, sP = [Sg() for _ in range(5)]
    vT0, vT1, vT2, vT3 = V(), V(), V(), V()
    L_Y, L_ZERO, L_O = LB, LB + 10240, LB + 10496
    RS = 20*144
    a(f"s_and_b32 {s0}, {sid}, 7\ns_lshl_b32 {s0}, {s0}, 5\ns_lshr_b32 {s1}, {sid}, 3\ns_add_u32 {sT}, {s0}, {s1}")
    a(f"s_and_b32 {sH}, {sW}, 1\ns_lshr_b32 {sP}, {sW}, 1")
    def loads():
        a(f"v_lshrrev_b32 {vT0}, 2, {vL}\nv_lshlrev_b32 {vT0}, 10, {vT0}\nv_and_b32 {vT1}, 3, {vL}\nv_add_lshl_u32 {vT0}, {vT0}, {vT1}, 4")
        a(f"s_lshl_b32 {s0}, {sT}, 6\ns_lshl_b32 {s1}, {sW}, 18\ns_add_u32 {s0}, {s0}, {s1}\ns_add_u32 {s0}, {s0}, {WS_Y}")
        a(f"s_lshl_b32 {s1}, {sW}, 10")
        L = a.label("r2skip")
        for i in range(3):
            if i == 2: a(f"s_cmp_ge_u32 {sW}, 2\ns_cbranch_scc1 {L}")
            dma(a, f"s_add_u32 m0, {s1}, {L_Y + i*4096}", vT0, rWS, s0, flag=ld)
            if i < 2: a(f"s_add_u32 {s0}, {s0}, {1 << 20}")
        a(f"{L}:")
    if not pre: loads()
    vG, vI, fG, fI, fD = [V() for _ in range(5)]
    a(f"v_lshrrev_b32 {vG}, 4, {vL}\nv_and_b32 {vI}, 15, {vL}\nv_cvt_f32_u32 {fG}, {vG}\nv_cvt_f32_u32 {fI}, {vI}")
    a(f"s_lshl_b32 {s0}, {sH}, 4\nv_add_u32 {vT0}, {s0}, {vI}\nv_cvt_f32_u32 {fD}, {vT0}")
    z4 = V(4, 4)
    for q in range(4): a(f"v_mov_b32 {z4[q]}, 0")
    a(f"ds_write_b128 {z4[0]}, {z4} offset:{L_ZERO}")
    C, S_, mS, sC = V(4), V(4), V(4), V(4)
    ang, step = V(), V()
    a(f"v_mul_f32 {step}, {f32(1/32)}, {fD}\nv_mul_f32 {ang}, {f32(8.0)}, {fG}\nv_mul_f32 {ang}, {ang}, {step}")
    for q in range(4):
        a(f"v_cos_f32 {vT0}, {ang}\nv_sin_f32 {vT2}, {ang}\nv_add_f32 {ang}, {ang}, {step}")
        a(f"v_cos_f32 {vT1}, {ang}\nv_sin_f32 {vT3}, {ang}\nv_add_f32 {ang}, {ang}, {step}")
        cvtpk(a, C[q], vT0, vT1); cvtpk(a, S_[q], vT2, vT3)
    a(f"v_lshrrev_b32 {vT0}, 5, {vL}\nv_mul_u32_u24 {vT0}, 0x8000, {vT0}\nv_lshl_or_b32 {vT0}, {vT0}, 16, {vT0}\nv_xor_b32 {vT1}, 0x80008000, {vT0}")
    for q in range(4): a(f"v_xor_b32 {sC[q]}, {C[q]}, {vT0}\nv_xor_b32 {mS[q]}, {S_[q]}, {vT1}")
    M = V(8)
    sc = 2.0/(640*2048)
    for nt in range(2):
        if nt == 0: a(f"v_mul_f32 {step}, {f32(-1/20)}, {fI}")
        else: a(f"v_add_f32 {step}, {f32(-16/20)}, {step}")
        a(f"v_mul_f32 {ang}, {fG}, {step}")
        for t in range(3):
            a(f"v_cos_f32 {vT0}, {ang}\nv_sin_f32 {vT1}, {ang}")
            if t < 2: a(f"v_fma_f32 {ang}, {step}, 4.0, {ang}")
            a(f"v_mul_f32 {vT0}, {f32(sc)}, {vT0}\nv_mul_f32 {vT1}, {f32(sc)}, {vT1}")
            cvtpk(a, M[4*nt+t], vT0, vT1)
        a(f"v_mov_b32 {M[4*nt+3]}, 0")
    twr, twi = V(12), V(12)
    a(f"s_lshr_b32 {s0}, {sT}, 5\ns_mul_i32 {s0}, {s0}, 96\ns_add_u32 {s0}, {s0}, {sT}\ns_mul_i32 {s0}, {s0}, {sP}\ns_mul_i32 {s1}, {sP}, {f32(32/2048)}")
    a(f"v_cvt_f32_u32 {vT0}, {s0}\nv_mul_f32 {vT0}, {f32(1/2048)}, {vT0}")
    a(f"v_mul_f32 {step}, {f32(1/640)}, {fD}\nv_fma_f32 {ang}, {fG}, {step}, {vT0}")
    for t in range(3):
        for r in range(4):
            src = ang if r == 0 else vT0
            a(f"v_cos_f32 {twr[4*t+r]}, {src}\nv_sin_f32 {twi[4*t+r]}, {src}")
            if r < 3: a(f"v_add_f32 {vT0}, {s1}, {src}")
        if t < 2: a(f"v_fma_f32 {ang}, {step}, 4.0, {ang}")
    adr = V(6)
    a(f"v_bfe_u32 {vT0}, {vL}, 2, 2\nv_lshl_add_u32 {vT0}, {vG}, 3, {vT0}\nv_mul_u32_u24 {vT0}, 20, {vT0}\nv_and_b32 {vT1}, 3, {vL}\nv_add_lshl_u32 {vT0}, {vT0}, {vT1}, 4")
    a(f"s_mul_i32 {s0}, {sP}, 5120\ns_add_u32 {s1}, {s0}, {L_Y + 639*16}\ns_add_u32 {s0}, {s0}, {(L_Y - 16) & 0xffffffff}")
    a(f"v_add_u32 {vT2}, {s0}, {vT0}\nv_mov_b32 {vT3}, 16")
    set_exec(a, lanemask(lambda l: l >= 32))
    a(f"v_sub_u32 {vT2}, {s1}, {vT0}\nv_mov_b32 {vT3}, -16")
    set_exec(a, FULL)
    for t in range(3):
        for h in range(2):
            a(f"s_movk_i32 {s0}, {80*h + 4*t}\nv_mad_i32_i24 {adr[2*t+h]}, {vT3}, {s0}, {vT2}")
    for t in (0, 2):
        for h in range(2):
            def bad(l):
                k1 = 4*t + (l & 3); k2 = 8*(l >> 4) + 4*h + ((l >> 2) & 3)
                ok = (k1 <= 10 and (k1, k2) != (0, 0)) if k2 < 16 else (1 <= k1 <= 9 or (k1, k2) == (0, 16))
                return not ok
            set_exec(a, lanemask(bad))
            a(f"v_mov_b32 {adr[2*t+h]}, {L_ZERO}")
    set_exec(a, FULL)
    vO = V()
    a(f"s_mul_i32 {s0}, {sP}, {4*RS}\ns_lshl_b32 {s1}, {sH}, 6\ns_add_u32 {s0}, {s0}, {s1}")
    a(f"v_mul_u32_u24 {vO}, 144, {vI}\nv_lshl_add_u32 {vO}, {vG}, 4, {vO}\nv_add_u32 {vO}, {s0}, {vO}")
    if pre:
        pre(); loads()
    stamp(a, "setup")
    a("s_waitcnt vmcnt(0) lgkmcnt(0)\ns_barrier")
    stamp(a, "y")
    Ar, Ai = V(12), V(12)
    for t in range(3):
        for h in range(2): a(f"ds_read_b64_tr_b16 {Ar[4*t+2*h:4*t+2*h+2]}, {adr[2*t+h]}")
        for h in range(2): a(f"ds_read_b64_tr_b16 {Ai[4*t+2*h:4*t+2*h+2]}, {adr[2*t+h]} offset:8")
    Tr, Ti = V(12), V(12)
    for t in range(3):
        sl = slice(4*t, 4*t+4)
        a(f"s_waitcnt lgkmcnt({8-4*t})")
        mfma16(a, Tr[sl], Ar[sl], C, 0);       mfma16(a, Ti[sl], Ar[sl], S_, 0)
        mfma16(a, Tr[sl], Ai[sl], mS, Tr[sl]); mfma16(a, Ti[sl], Ai[sl], sC, Ti[sl])
    A2 = V(16); O = V(32, 4)
    for r in range(4):
        for t in range(3):
            t0, t1 = (vT0, vT1) if t & 1 else (vT2, vT3)
            cmul(a, Tr[4*t+r], Ti[4*t+r], twr[4*t+r], twi[4*t+r], t0, t1)
            cvtpk(a, A2[4*r+t], t0, t1)
        a(f"v_mov_b32 {A2[4*r+3]}, 0")
        for nt in range(2): mfma16(a, O[8*r+4*nt:8*r+4*nt+4], A2[4*r:4*r+4], M[4*nt:4*nt+4], 0)
    for r in range(4): a(f"ds_write_b128 {vO}, {O[8*r:8*r+4]} offset:{L_O + r*RS}")
    set_exec(a, lanemask(lambda l: (l & 15) < 4))
    for r in range(4): a(f"ds_write_b128 {vO}, {O[8*r+4:8*r+8]} offset:{L_O + r*RS + 16*144}")
    set_exec(a, FULL)
    stamp(a, "fft")
    for i in range(80): assert (i*205) >> 11 == i//10
    a(f"s_lshr_b32 {s0}, {sT}, 3\ns_mul_i32 {s0}, {s0}, 81920\ns_and_b32 {s1}, {sT}, 7\ns_lshl_b32 {s1}, {s1}, 3\ns_add_u32 {s1}, {s1}, {sW}")
    a(f"s_mul_i32 {s1}, {s1}, 160\ns_add_u32 {s0}, {s0}, {s1}\ns_add_u32 {s0}, {s0}, {WS_S}\ns_mul_i32 {s1}, {sW}, {RS}")
    a(f"v_lshrrev_b32 {vT0}, 2, {vL}\nv_mul_u32_u24 {vT0}, 144, {vT0}\nv_and_b32 {vT1}, 3, {vL}\nv_lshl_add_u32 {vT0}, {vT1}, 5, {vT0}\nv_add_u32 {vT0}, {s1}, {vT0}")
    a("s_waitcnt lgkmcnt(0)\ns_barrier")
    for rd in range(2):
        if rd: set_exec(a, 0xffff)
        Q = O[16*rd:16*rd+16]
        for p in range(2):
            for q in range(2): a(f"ds_read_b128 {Q[8*p+4*q:8*p+4*q+4]}, {vT0} offset:{L_O + p*4*RS + q*16 + rd*16*144}")
        a(f"v_add_u32 {vT1}, {64*rd}, {vL}\nv_mul_u32_u24 {vT2}, 205, {vT1}\nv_lshrrev_b32 {vT2}, 11, {vT2}")
        a(f"v_mul_u32_u24 {vT2}, {(10240-160)//16}, {vT2}\nv_add_lshl_u32 {vT1}, {vT2}, {vT1}, 4")
        a("s_waitcnt lgkmcnt(0)")
        o0, o1 = A2[8*rd:8*rd+4], A2[8*rd+4:8*rd+8]
        for k in range(4):
            a(f"v_add_f32 {vT2}, {Q[2*k]}, {Q[8+2*k]}\nv_add_f32 {vT3}, {Q[2*k+1]}, {Q[9+2*k]}")
            cvtpk(a, o0[k], vT2, vT3)
            a(f"v_sub_f32 {vT2}, {Q[2*k]}, {Q[8+2*k]}\nv_sub_f32 {vT3}, {Q[2*k+1]}, {Q[9+2*k]}")
            cvtpk(a, o1[k], vT2, vT3)
        a(f"buffer_store_dwordx4 {o0}, {vT1}, {rWS}, {s0} offen {st}")
        a(f"buffer_store_dwordx4 {o1}, {vT1}, {rWS}, {s0} offen offset:640 {st}")
    set_exec(a, FULL)
    return dict(t=sT)
```

```python
from common import *
import aux, gemm
HDR = open("recurrent_scan__spectral_gfnet__geglu_ffn__prompt.s.ref").read().split("; Override launch")[0]

def kernel(label, nwg, role, stamps=None):
    a = Asm()
    a.stamps_on = stamps is not None; a.stamp_base = stamps
    a(kernel_head(label))
    Lend = label + "_end"
    a.nlab = 0
    a.label = (lambda base="L", a=a: (setattr(a, "nlab", a.nlab+1), f"{label}_{base}_{a.nlab}")[1])
    a(f"s_cmp_ge_u32 s2, {nwg}\ns_cbranch_scc1 {Lend}")
    stamp_begin(a)
    load_kernargs(a)
    V = Alloc("v", 1, 256); Sg = Alloc("s", 24, 68)
    sW, vL = aux.wave_lane(a, V, Sg)
    rWS = Sg(4)
    a("s_waitcnt lgkmcnt(0)")
    mk_srd(a, rWS, P_WS, WS_END)
    role(a, V, Sg, R("s", 2), sW, vL, rWS)
    stamp_end(a, rWS, sW, "s2")
    a(f"{Lend}:\ns_endpgm")
    STAMPS[label] = a.stamps
    return hazard.fix(a.lines), V.hi, (100 if a.stamps_on else Sg.hi)

STAMPS = {}
def spin_kernel(off):
    return kernel_head("spin_kernel") + f"""
s_cmp_ge_u32 s2, 1
s_cbranch_scc1 spin_end
s_load_dwordx2 s[4:5], s[0:1], 72
s_waitcnt lgkmcnt(0)
s_add_u32 s4, s4, {off}
s_addc_u32 s5, s5, 0
s_load_dword s6, s[4:5], 0
s_mov_b32 s10, 4000
s_waitcnt lgkmcnt(0)
spin_loop:
s_memrealtime s[8:9]
s_waitcnt lgkmcnt(0)
s_sub_u32 s8, s8, s6
s_sub_u32 s10, s10, 1
s_cmp_eq_u32 s10, 0
s_cbranch_scc1 spin_end
s_cmp_lt_u32 s8, 10000
s_cbranch_scc1 spin_loop
spin_end:
s_endpgm
"""
def build(fn, order, nops=0, stamps=False, spin=None):
    K = {"aux1": (256, 65536, aux.role_aux1), "colfft": (160, 32768, aux.role_c), "rowinv": (256, 40960, aux.role_r2),
         "gemm1": (256, 81920, gemm.role_g1), "gemm2": (256, 81920, gemm.role_g2)}
    out = HDR
    for i in range(nops): out += "; @launch kernel=nop_kernel grid=(256,1,1) block=(256,1,1) lds=0\n"
    for k in order: out += f"; @launch kernel={k}_kernel grid=({K[k][0]},1,1) block=(256,1,1) lds={K[k][1]}\n"
    if spin is not None: out += "; @launch kernel=spin_kernel grid=(1,1,1) block=(64,1,1) lds=0\n"
    out += '.amdgcn_target "amdgcn-amd-amdhsa--gfx950"\n.text\n'
    kds = ""
    for ki, k in enumerate(dict.fromkeys(order)):
        lines, nv, ns = kernel(k + "_kernel", K[k][0], K[k][2], ki if stamps else None)
        out += "\n".join(lines) + "\n"
        kds += kd(k + "_kernel", nv, ns) + "\n"
        print(k, "vgpr", nv, "sgpr", ns, "lines", len(lines))
    if nops:
        out += kernel_head("nop_kernel") + "\ns_endpgm\n"; kds += kd("nop_kernel", 8, 16) + "\n"
    if spin is not None:
        out += spin_kernel(spin); kds += kd("spin_kernel", 8, 16) + "\n"
    out += '.section .rodata,"a"\n' + kds
    open(fn, "w").write(out)
    if stamps:
        import json; json.dump([(k, K[k][0], STAMPS[k + "_kernel"]) for k in dict.fromkeys(order)], open(fn + ".json", "w"))

if __name__ == "__main__":
    build("multi5.s", ["aux1", "gemm1", "colfft", "rowinv", "gemm2"])
    build("multi5_st.s", ["aux1", "gemm1", "colfft", "rowinv", "gemm2"], stamps=True)
```

```python
import sys, struct, math
sys.path.insert(0, "tools")
from asmlib import *
import hazard

WS_Z   = 0x0000000
WS_Y   = 0x0280000
WS_WT  = 0x0500000
WS_S   = 0x0780000
WS_H   = 0x0A00000
WS_WDP = 0x1000000
WS_ST  = 0x1200000
WS_CS  = 0x1204000
WS_FL  = 0x1220000
WS_END = 0x1300000

P_X, P_WR, P_WI, P_BX, P_WG, P_WU, P_WD, P_OUT, P_DBG, P_WS = 4, 6, 8, 10, 12, 14, 16, 18, 20, 22

def f32(x):
    return "0x%08x" % struct.unpack("<I", struct.pack("<f", x))[0]

class R:
    def __init__(self, kind, base, n=1): self.kind, self.base, self.n = kind, base, n
    def __getitem__(self, i):
        if isinstance(i, slice):
            a = i.start or 0; b = i.stop if i.stop is not None else self.n
            assert 0 <= a < b <= self.n, (a, b, self.n)
            return R(self.kind, self.base + a, b - a)
        assert 0 <= i < self.n, (i, self.n)
        return R(self.kind, self.base + i, 1)
    def __str__(self):
        return f"{self.kind}{self.base}" if self.n == 1 else f"{self.kind}[{self.base}:{self.base+self.n-1}]"
    __repr__ = __str__
    def __format__(self, spec): return str(self)

class Alloc:
    def __init__(self, kind, start, limit): self.kind, self.p, self.limit, self.hi = kind, start, limit, start
    def __call__(self, n=1, align=None):
        if align is None: align = 1 if n == 1 else (2 if self.kind == "v" else (2 if n == 2 else 4))
        self.p = (self.p + align - 1)//align*align
        r = R(self.kind, self.p, n); self.p += n
        assert self.p <= self.limit, f"out of {self.kind} regs"
        self.hi = max(self.hi, self.p)
        return r
    def mark(self): return self.p
    def reset(self, m): self.p = m

def load_kernargs(a):
    a("s_load_dwordx16 s[4:19], s[0:1], 0")
    a("s_load_dwordx4 s[20:23], s[0:1], 64")

def mk_srd(a, d, ptr, nbytes):
    a(f"s_mov_b64 {d[0:2]}, s[{ptr}:{ptr+1}]")
    a(f"s_mov_b32 {d[2]}, {nbytes}")
    a(f"s_mov_b32 {d[3]}, 0x00020000")

def set_exec(a, mask):
    if mask == (1 << 64) - 1:
        a("s_mov_b64 exec, -1")
    else:
        a(f"s_mov_b32 exec_lo, 0x{mask & 0xffffffff:x}")
        a(f"s_mov_b32 exec_hi, 0x{mask >> 32:x}")
FULL = (1 << 64) - 1
def lanemask(f): return sum(1 << l for l in range(64) if f(l))

def mfma16(a, d, A, B, C): a(f"v_mfma_f32_16x16x32_bf16 {d}, {A}, {B}, {C}")
def mfma32(a, d, A, B, C): a(f"v_mfma_f32_32x32x16_bf16 {d}, {A}, {B}, {C}")
def cvtpk(a, d, lo, hi): a(f"v_cvt_pk_bf16_f32 {d}, {lo}, {hi}")

def cmul(a, re, im, fr, fi, t0, t1, conj=False):
    a(f"v_mul_f32 {t0}, {re}, {fr}")
    a(f"v_mul_f32 {t1}, {im}, {fr}")
    if not conj:
        a(f"v_fma_f32 {t0}, -{im}, {fi}, {t0}")
        a(f"v_fmac_f32 {t1}, {re}, {fi}")
    else:
        a(f"v_fmac_f32 {t0}, {im}, {fi}")
        a(f"v_fma_f32 {t1}, -{re}, {fi}, {t1}")

WS_STAMP = 0x1240000
def stamp(a, name):
    if not getattr(a, "stamps_on", False): return
    if getattr(a, "stamp_filter", None) is not None and name not in a.stamp_filter: return
    k = len(a.stamps); a.stamps.append(name)
    assert k < 14
    a(f"s_memtime s[98:99]\ns_waitcnt lgkmcnt(0)\ns_mov_b32 s{84+k}, s98")

def stamp_begin(a):
    a.stamps = []
    if not getattr(a, "stamps_on", False): return
    a("s_memrealtime s[80:81]")
    stamp(a, "start")

def stamp_end(a, rWS, sW, slot):
    if not getattr(a, "stamps_on", False): return
    a("s_waitcnt vmcnt(0)")
    stamp(a, "end")
    a("s_memrealtime s[82:83]\ns_waitcnt lgkmcnt(0)")
    a("s_mov_b64 exec, 1")
    a(f"s_lshl_b32 s3, {slot}, 2\ns_add_u32 s3, s3, {sW}\ns_lshl_b32 s3, s3, 6\ns_add_u32 s3, s3, {WS_STAMP + a.stamp_base*65536}")
    a("v_mov_b32 v2, s80\nv_mov_b32 v3, s82")
    for k in range(14): a(f"v_mov_b32 v{4+k}, s{84+min(k, len(a.stamps)-1)}")
    for q in range(4): a(f"buffer_store_dwordx4 v[{2+4*q}:{5+4*q}], off, {rWS}, s3 offset:{16*q}")
```

```python
from common import *
from aux import dma

LW, LX = 0, 49152
K0 = -2.0 * math.sqrt(2.0/math.pi) * math.log2(math.e)
K1 = K0 * 0.044715

def role_g1(a, V, Sg, sid, sW, vL, rWS, st="", ld="", pre_epi=None):
    rX, rW = Sg(4), Sg(4)
    s0, s1, sRB, sFB, sC, sXo, sWo, sXb, sWb, sCnt, sMX, sMW, sWm, sWn = [Sg() for _ in range(14)]
    vT0, vT1, vT2, vT3 = V(), V(), V(), V()
    a(f"s_and_b32 {s0}, {sid}, 1\ns_lshl_b32 {s0}, {s0}, 3\ns_bfe_u32 {s1}, {sid}, 0x30003\ns_add_u32 {sRB}, {s0}, {s1}")
    a(f"s_and_b32 {s0}, {sid}, 6\ns_lshl_b32 {s0}, {s0}, 1\ns_lshr_b32 {sFB}, {sid}, 6\ns_mul_i32 {sC}, {sFB}, 3\ns_add_u32 {sFB}, {sFB}, {s0}")
    a(f"s_add_u32 {sC}, {sC}, {s1}\ns_sub_u32 {s0}, {sC}, 10\ns_cmp_ge_u32 {sC}, 10\ns_cselect_b32 {sC}, {s0}, {sC}")
    mk_srd(a, rX, P_X, 2621440)
    a(f"s_cmp_lt_u32 {sW}, 2\ns_cselect_b64 {rW[0:2]}, s[{P_WG}:{P_WG+1}], s[{P_WU}:{P_WU+1}]\ns_cselect_b32 {s1}, 0, 2")
    a(f"s_mov_b32 {rW[2]}, 1966080\ns_mov_b32 {rW[3]}, 0x00020000")
    a(f"s_and_b32 {sWm}, {sW}, 1\ns_lshr_b32 {sWn}, {sW}, 1")
    vW = V(3)
    for i in range(192): assert (i*171) >> 11 == i//12
    for i in range(3):
        a(f"v_add_u32 {vT0}, {64*i}, {vL}\nv_mul_u32_u24 {vT1}, 171, {vT0}\nv_lshrrev_b32 {vT1}, 11, {vT1}")
        a(f"v_mul_u32_u24 {vT2}, 12, {vT1}\nv_sub_u32 {vT0}, {vT0}, {vT2}\nv_xor_b32 {vT0}, {s1}, {vT0}")
        a(f"v_mul_u32_u24 {vT1}, 192, {vT1}\nv_add_lshl_u32 {vW[i]}, {vT1}, {vT0}, 4")
    a(f"s_mul_i32 {sWb}, {sFB}, 192\ns_mul_i32 {s0}, {sWm}, {16*3072}\ns_add_u32 {sWb}, {sWb}, {s0}")
    a(f"s_mul_i32 {sMW}, {sW}, 3072\ns_add_u32 {sMW}, {sMW}, {LW}")
    vX = V(2)
    a(f"v_bfe_u32 {vT0}, {vL}, 3, 2\nv_lshrrev_b32 {vT1}, 5, {vL}\nv_lshl_add_u32 {vT0}, {vT1}, 5, {vT0}\nv_mul_u32_u24 {vT0}, {32*80}, {vT0}")
    a(f"v_lshrrev_b32 {vT1}, 4, {vL}\nv_xor_b32 {vT1}, {vT1}, {vL}\nv_and_b32 {vT1}, 7, {vT1}")
    a(f"v_add_lshl_u32 {vX[0]}, {vT0}, {vT1}, 4\nv_xor_b32 {vX[1]}, 64, {vX[0]}")
    a(f"s_lshr_b32 {s0}, {sRB}, 1\ns_lshl_b32 {s0}, {s0}, 3\ns_and_b32 {s1}, {sRB}, 1\ns_add_u32 {s0}, {s0}, {s1}\ns_lshl_b32 {s0}, {s0}, 2\ns_add_u32 {s0}, {s0}, {sW}")
    a(f"s_mul_i32 {sXb}, {s0}, {4*1280}")
    a(f"s_lshl_b32 {sMX}, {sW}, 12\ns_add_u32 {sMX}, {sMX}, {LX - 1024}")
    BIG = 0x40000000
    def chunk_offsets():
        a(f"s_lshl_b32 {sXo}, {sC}, 7\ns_add_u32 {sXo}, {sXo}, {sXb}\ns_mul_i32 {sWo}, {sC}, {64*3072}\ns_add_u32 {sWo}, {sWo}, {sWb}")
    def next_chunk():
        a(f"s_add_u32 {sC}, {sC}, 1\ns_cmp_eq_u32 {sC}, 10\ns_cselect_b32 {sC}, 0, {sC}")
    def dmaX(i, slot):
        dma(a, f"s_add_u32 m0, {sMX}, {slot*16384 + i*1024 - i*1280 + 1024}", vX[i & 1], rX, sXo, imm=i*1280)
    def dmaW(i, slot, so):
        dma(a, f"s_add_u32 m0, {sMW}, {slot*12288 + i*1024}", vW[i], rW, so)
    sWo1 = Sg()
    chunk_offsets()
    for i in range(4): dmaX(i, 0)
    for i in range(3): dmaW(i, 0, sWo)
    a(f"s_add_u32 {sWo1}, {sWo}, {32*3072}")
    for i in range(3): dmaW(i, 1, sWo1)
    next_chunk(); chunk_offsets()
    for i in range(3): dmaW(i, 2, sWo)
    aX = V(4); aW = V(2)
    a(f"v_and_b32 {vT0}, 31, {vL}\nv_lshrrev_b32 {vT1}, 5, {vL}\nv_bfe_u32 {vT2}, {vL}, 1, 3\nv_xor_b32 {vT2}, {vT2}, {vT1}")
    a(f"s_lshl_b32 {s0}, {sWn}, 13\ns_add_u32 {s0}, {s0}, {LX}\nv_lshlrev_b32 {vT0}, 7, {vT0}\nv_add_u32 {vT0}, {s0}, {vT0}\nv_lshl_add_u32 {aX[0]}, {vT2}, 4, {vT0}")
    for kk in range(1, 4): a(f"v_xor_b32 {aX[kk]}, {32*kk}, {aX[0]}")
    a(f"v_bfe_u32 {vT0}, {vL}, 2, 2\nv_lshl_add_u32 {vT0}, {vT1}, 3, {vT0}\nv_mul_u32_u24 {vT0}, 192, {vT0}")
    a(f"v_and_b32 {vT2}, 3, {vL}\nv_lshl_add_u32 {vT0}, {vT2}, 3, {vT0}\nv_bfe_u32 {vT2}, {vL}, 4, 1")
    a(f"v_mul_u32_u24 {vT3}, 6144, {vT2}\nv_add_u32 {vT0}, {vT0}, {vT3}")
    a(f"s_mul_i32 {s0}, {sWm}, 3\ns_add_u32 {s1}, {s0}, 1")
    a(f"v_xor_b32 {vT3}, {s0}, {vT2}\nv_lshl_add_u32 {aW[0]}, {vT3}, 5, {vT0}\nv_xor_b32 {vT3}, {s1}, {vT2}\nv_lshl_add_u32 {aW[1]}, {vT3}, 5, {vT0}")
    acc = V(96)
    fW = [V(12), V(12)]; fX = [V(8), V(8)]
    for i in range(96): a(f"v_mov_b32 {acc[i]}, 0")
    for i in range(12): a(f"v_mov_b32 {fW[1][i]}, 0")
    for i in range(8): a(f"v_mov_b32 {fX[1][i]}, 0")
    def reads(buf, xslot, wslot, kk):
        out = []
        ss = kk & 1
        def rw(T):
            for n in range(2):
                out.append(f"ds_read_b64_tr_b16 {fW[buf][4*T+2*n:4*T+2*n+2]}, {aW[T & 1]} offset:{LW + wslot*12288 + ss*3072 + n*768 + (T >> 1)*64}")
        def rx(nt): out.append(f"ds_read_b128 {fX[buf][4*nt:4*nt+4]}, {aX[kk]} offset:{xslot*16384 + nt*4096}")
        rw(0); rx(0); rx(1); rw(1); rw(2)
        return out
    def mfmas(buf):
        return [f"v_mfma_f32_32x32x16_bf16 {acc[32*T+16*nt:32*T+16*nt+16]}, {fW[buf][4*T:4*T+4]}, {fX[buf][4*nt:4*nt+4]}, {acc[32*T+16*nt:32*T+16*nt+16]}"
                for T in range(3) for nt in range(2)]
    def group(buf, rd, extra):
        mm = mfmas(buf)
        per = [rd[0:3], rd[3:6], rd[6:8], [], [], []]
        ex = list(extra)
        slots = [2, 3, 4, 5, 3, 4, 5, 2]
        exs = [[] for _ in range(6)]
        for k, e in enumerate(ex): exs[min(5, 2 + (k*4)//max(1, len(ex)))].append(e)
        for g in range(6):
            a(mm[g])
            for r in per[g]: a(r)
            for e in exs[g]: e()
    a(f"s_mov_b32 {sCnt}, 5")
    a("s_waitcnt vmcnt(6)")
    stamp(a, "first")
    Lp = a.label("g1loop")
    a(f"{Lp}:")
    for cc in range(2):
        for h in range(2):
            hs = 2*cc + h
            a("s_barrier")
            if h == 0:
                ex = [lambda i=i: dmaX(i, cc ^ 1) for i in range(4)]
                ex2 = [lambda: a(f"s_add_u32 {sWo1}, {sWo}, {32*3072}")] + [lambda i=i: dmaW(i, (hs+3) & 3, sWo1) for i in range(3)]
            else:
                def adv():
                    next_chunk(); chunk_offsets()
                    a(f"s_cmp_eq_u32 {sCnt}, 1\ns_cselect_b32 {s0}, {BIG}, 0\ns_add_u32 {sXo}, {sXo}, {s0}\ns_add_u32 {sWo}, {sWo}, {s0}")
                ex = [adv] + [lambda i=i: dmaW(i, (hs+3) & 3, sWo) for i in range(3)]
                ex2 = []
            group(1, reads(0, cc, hs, 2*h), ex)
            a("s_waitcnt lgkmcnt(0)")
            group(0, reads(1, cc, hs, 2*h+1), ex2)
            if cc == 1 and h == 1: a(f"s_sub_u32 {sCnt}, {sCnt}, 1\ns_cmp_lg_u32 {sCnt}, 0")
            a(f"s_waitcnt vmcnt({10 if h == 0 else 6}) lgkmcnt(0)")
    a(f"s_cbranch_scc1 {Lp}")
    for m in mfmas(1): a(m)
    stamp(a, "loop")
    if pre_epi: pre_epi()
    stt = V(4); csp = V(9)
    a(f"v_and_b32 {vT0}, 31, {vL}\nv_lshlrev_b32 {vT0}, 3, {vT0}")
    a(f"s_lshl_b32 {s0}, {sRB}, 1\ns_add_u32 {s0}, {s0}, {sWn}\ns_lshl_b32 {s1}, {s0}, 9\ns_add_u32 {s1}, {s1}, {WS_ST}")
    for nt in range(2): a(f"buffer_load_dwordx2 {stt[2*nt:2*nt+2]}, {vT0}, {rWS}, {s1} offen offset:{256*nt} {ld}")
    a(f"v_and_b32 {vT0}, 15, {vL}\nv_bfe_u32 {vT1}, {vL}, 4, 1\nv_mul_u32_u24 {vT1}, 1536, {vT1}\nv_lshrrev_b32 {vT2}, 5, {vL}\nv_mul_u32_u24 {vT2}, {3*3072}, {vT2}")
    a(f"v_add3_u32 {vT0}, {vT0}, {vT1}, {vT2}\nv_lshlrev_b32 {vT0}, 2, {vT0}")
    a(f"s_lshl_b32 {s1}, {sFB}, 1\ns_add_u32 {s1}, {s1}, {sWm}\ns_mul_i32 {sC}, {s1}, 3\ns_lshl_b32 {s1}, {sC}, 6\ns_add_u32 {s1}, {s1}, {WS_CS}")
    for T in range(3): a(f"v_mov_b32 {csp[6+T]}, 0")
    for k in range(3):
        if k == 2: set_exec(a, 0xffffffff)
        for T in range(3): a(f"buffer_load_dword {csp[3*k+T]}, {vT0}, {rWS}, {s1} offen offset:{64*T} {ld}")
        if k < 2: a(f"s_add_u32 {s1}, {s1}, 12288")
    set_exec(a, FULL)
    eA, eB = fW[0], fX[0]
    for T in range(3): a(f"v_mov_b32 {eA[4*T+2]}, 0\nv_mov_b32 {eA[4*T+3]}, 0")
    for nt in range(2): a(f"v_mov_b32 {eB[4*nt+2]}, 0\nv_mov_b32 {eB[4*nt+3]}, 0")
    vH = V()
    a(f"v_bfe_u32 {vT1}, {vL}, 4, 1\nv_lshrrev_b32 {vT2}, 5, {vL}\nv_lshl_add_u32 {vT1}, {vT1}, 2, {vT2}\nv_and_b32 {vT2}, 15, {vL}")
    a(f"v_lshl_add_u32 {vT1}, {vT1}, 4, {vT2}\nv_lshlrev_b32 {vH}, 4, {vT1}")
    a(f"s_mul_i32 {s0}, {s0}, {48*4096}\ns_add_u32 {s0}, {s0}, {WS_H}")
    a("s_waitcnt vmcnt(0)")
    stamp(a, "stats")
    kk0, kk1, ve = V(4), V(4), V(4)
    for nt in range(2):
        m_, v_ = stt[2*nt], stt[2*nt+1]
        a(f"v_cvt_pk_bf16_f32 {eB[4*nt]}, -{m_}, -{m_}\nv_and_b32 {vT0}, 0xffff0000, {eB[4*nt]}\nv_add_f32 {vT0}, {vT0}, {m_}")
        a(f"v_cvt_pk_bf16_f32 {eB[4*nt+1]}, -{vT0}, 0")
        a(f"v_rsq_f32 {vT1}, {v_}\nv_mov_b32 {ve[2*nt]}, {v_}\nv_mov_b32 {ve[2*nt+1]}, {v_}")
        a(f"v_mul_f32 {kk0[2*nt]}, {f32(K0)}, {vT1}\nv_mul_f32 {vT2}, {vT1}, {vT1}\nv_mul_f32 {vT2}, {vT2}, {vT1}\nv_mul_f32 {kk1[2*nt]}, {f32(K1)}, {vT2}")
        a(f"v_mov_b32 {kk0[2*nt+1]}, {kk0[2*nt]}\nv_mov_b32 {kk1[2*nt+1]}, {kk1[2*nt]}")
    for T in range(3):
        a(f"v_add_f32 {vT0}, {csp[T]}, {csp[3+T]}\nv_add_f32 {vT0}, {vT0}, {csp[6+T]}")
        a(f"v_cvt_pk_bf16_f32 {eA[4*T+1]}, {vT0}, 0\nv_lshlrev_b32 {vT1}, 16, {eA[4*T+1]}\nv_sub_f32 {vT2}, {vT0}, {vT1}")
        cvtpk(a, eA[4*T], vT1, vT2)
    for m in mfmas(0): a(m)
    tz = V(8); ho = [V(4, 4), V(4, 4)]
    for T in range(3):
        a(f"s_add_u32 {s1}, {sC}, {T}\ns_and_b32 {sXo}, {s1}, 1\ns_lshl_b32 {sXo}, {sXo}, 9\ns_lshr_b32 {s1}, {s1}, 1\ns_lshl_b32 {s1}, {s1}, 12")
        a(f"s_add_u32 {s1}, {s1}, {sXo}\ns_add_u32 {s1}, {s1}, {s0}")
        for nt in range(2):
            g_ = acc[32*T+16*nt:32*T+16*nt+8]; u_ = acc[32*T+16*nt+8:32*T+16*nt+16]
            c0, c1, cv = kk0[2*nt:2*nt+2], kk1[2*nt:2*nt+2], ve[2*nt:2*nt+2]
            P = [slice(2*q, 2*q+2) for q in range(4)]
            for p in P: a(f"v_pk_mul_f32 {tz[p]}, {g_[p]}, {g_[p]}")
            for p in P: a(f"v_pk_fma_f32 {tz[p]}, {tz[p]}, {c1}, {c0}")
            for p in P: a(f"v_pk_mul_f32 {tz[p]}, {tz[p]}, {g_[p]}")
            for q in range(8): a(f"v_exp_f32 {tz[q]}, {tz[q]}")
            for p in P: a(f"v_pk_mul_f32 {g_[p]}, {g_[p]}, {u_[p]}")
            for p in P: a(f"v_pk_fma_f32 {tz[p]}, {tz[p]}, {cv}, {cv}")
            for q in range(8): a(f"v_rcp_f32 {tz[q]}, {tz[q]}")
            for p in P: a(f"v_pk_mul_f32 {g_[p]}, {g_[p]}, {tz[p]}")
            for q in range(4): cvtpk(a, ho[nt][q], g_[2*q], g_[2*q+1])
            a(f"buffer_store_dwordx4 {ho[nt]}, {vH}, {rWS}, {s1} offen offset:{2048*nt} {st}")
    stamp(a, "gelu")
    return dict(rb=sRB, fb=sFB, wm=sWm, wn=sWn)

def role_g2(a, V, Sg, sid, sW, vL, rWS, ld="", pre=None, pre_s=None):
    rX, rO = Sg(4), Sg(4)
    s0, s1, sR, sCT, sH, sD = [Sg() for _ in range(6)]
    vT0, vT1, vT2, vT3 = V(), V(), V(), V()
    a(f"s_and_b32 {s0}, {sid}, 7\ns_lshl_b32 {s0}, {s0}, 2\ns_bfe_u32 {s1}, {sid}, 0x20003\ns_add_u32 {sR}, {s0}, {s1}\ns_lshr_b32 {sCT}, {sid}, 5")
    v16, v16b = V(), V()
    a(f"v_lshlrev_b32 {v16}, 4, {vL}\nv_add_u32 {v16b}, 4096, {v16}")
    a(f"s_lshl_b32 {s0}, {sR}, 2\ns_add_u32 {s0}, {s0}, {sW}\ns_mul_i32 {sH}, {s0}, {12*4096}\ns_add_u32 {sH}, {sH}, {WS_H}")
    a(f"s_mul_i32 {sD}, {sW}, {12*40960}\ns_mul_i32 {s0}, {sCT}, 5120\ns_add_u32 {sD}, {sD}, {s0}\ns_add_u32 {sD}, {sD}, {WS_WDP}")
    NB = 4
    fH = [V(16, 4) for _ in range(NB)]; fD = [V(20, 4) for _ in range(NB)]
    acc = V(80, 4)
    if pre: pre(sR, s0)
    def loads(ks):
        b = ks % NB; out = []
        for n in range(5):
            out.append(f"buffer_load_dwordx4 {fD[b][4*n:4*n+4]}, {v16 if n < 4 else v16b}, {rWS}, {sD} offen offset:{1024*(n & 3)} {ld}")
        for m in range(4):
            out.append(f"buffer_load_dwordx4 {fH[b][4*m:4*m+4]}, {v16}, {rWS}, {sH} offen offset:{1024*m} {ld}")
        out.append(f"s_add_u32 {sD}, {sD}, 40960\ns_add_u32 {sH}, {sH}, 4096")
        return out
    for ks in range(NB-1):
        for l in loads(ks): a(l)
    for ks in range(12):
        b = ks % NB
        ld_ = loads(ks+NB-1) if ks + NB - 1 < 12 else []
        ahead = min(12, ks+NB-1) - (ks+1)
        a(f"s_waitcnt vmcnt({9*ahead})")
        if ks == 0: stamp(a, "first")
        k = 0
        for m in range(4):
            for n in range(5):
                d = acc[20*m+4*n:20*m+4*n+4]
                mfma16(a, d, fD[b][4*n:4*n+4], fH[b][4*m:4*m+4], d if ks else 0)
                if k % 2 == 1 and ld_: a(ld_.pop(0))
                k += 1
        assert not ld_
    stamp(a, "loop")
    mk_srd(a, rX, P_X, 2621440); mk_srd(a, rO, P_OUT, 2621440)
    if pre_s: pre_s(sR, s0)
    xs, ss, vXo, vLo = fH[0], fH[1], fD[0][0:3], fD[0][4:7]
    for i in range(160): assert (i*205) >> 11 == i//10
    a(f"s_lshr_b32 {s0}, {sR}, 2\ns_lshl_b32 {s0}, {s0}, 4\ns_and_b32 {s1}, {sR}, 3\ns_add_u32 {s0}, {s0}, {s1}\ns_lshl_b32 {s0}, {s0}, 2\ns_add_u32 {s0}, {s0}, {sW}")
    a(f"s_mul_i32 {s0}, {s0}, {2*1280}\ns_mul_i32 {s1}, {sCT}, 160\ns_add_u32 {sD}, {s0}, {s1}")
    a(f"s_lshl_b32 {s0}, {sR}, 3\ns_add_u32 {s0}, {s0}, {sCT}\ns_lshl_b32 {s0}, {s0}, 2\ns_add_u32 {s0}, {s0}, {sW}\ns_mul_i32 {s0}, {s0}, 2560\ns_add_u32 {sH}, {s0}, {WS_S}")
    GS = 336
    a(f"s_mul_i32 {s1}, {sW}, {16*GS}")
    for rd in range(3):
        if rd == 2: set_exec(a, 0xffffffff)
        a(f"v_add_u32 {vT0}, {64*rd}, {vL}\nv_mul_u32_u24 {vT1}, 205, {vT0}\nv_lshrrev_b32 {vT1}, 11, {vT1}")
        a(f"v_mul_u32_u24 {vT2}, 10, {vT1}\nv_sub_u32 {vT0}, {vT0}, {vT2}")
        a(f"v_mul_u32_u24 {vT2}, {GS}, {vT1}\nv_lshl_add_u32 {vT2}, {vT0}, 5, {vT2}\nv_add_u32 {vLo[rd]}, {s1}, {vT2}")
        a(f"v_and_b32 {vT2}, 3, {vT1}\nv_bfe_u32 {vT3}, {vT1}, 2, 1\nv_lshl_add_u32 {vT2}, {vT3}, 5, {vT2}\nv_lshlrev_b32 {vT2}, 5, {vT2}")
        a(f"v_lshrrev_b32 {vT1}, 3, {vT1}\nv_add_u32 {vT1}, {vT1}, {vT2}\nv_mul_u32_u24 {vT1}, 80, {vT1}\nv_add_lshl_u32 {vXo[rd]}, {vT1}, {vT0}, 4")
        a(f"buffer_load_dwordx4 {xs[4*rd:4*rd+4]}, {vXo[rd]}, {rX}, {sD} offen")
        a(f"buffer_load_dwordx4 {ss[4*rd:4*rd+4]}, {v16}, {rWS}, {sH} offen offset:{1024*rd} {ld}")
    set_exec(a, FULL)
    for m in range(4):
        L = a.label("rs")
        a(f"s_cmp_eq_u32 {sW}, {m}\ns_cbranch_scc1 {L}")
        a(f"s_add_u32 {s0}, {sW}, {3-m}\ns_and_b32 {s0}, {s0}, 3\ns_mul_i32 {s0}, {s0}, 5120\nv_add_u32 {vT0}, {s0}, {v16}")
        for n in range(5): a(f"ds_write_b128 {vT0}, {acc[20*m+4*n:20*m+4*n+4]} offset:{m*15360 + n*1024}")
        L2 = a.label("rs")
        a(f"s_branch {L2}\n{L}:")
        for q in range(20): a(f"v_mov_b32 {fD[1][q]}, {acc[20*m+q]}")
        a(f"{L2}:")
    y = fD[1]
    a(f"s_mul_i32 {s0}, {sW}, 15360\nv_add_u32 {vT0}, {s0}, {v16}")
    a("s_waitcnt lgkmcnt(0)\ns_barrier")
    for j in range(15): a(f"ds_read_b128 {acc[4*j:4*j+4]}, {vT0} offset:{j*1024}")
    a(f"v_and_b32 {vT1}, 15, {vL}\nv_mul_u32_u24 {vT1}, {GS}, {vT1}\nv_and_b32 {vT2}, 48, {vL}\nv_add3_u32 {vT1}, {vT1}, {vT2}, {s1}")
    for j in range(3):
        a(f"s_waitcnt lgkmcnt({10-5*j})")
        for q in range(0, 20, 2): a(f"v_pk_add_f32 {y[q:q+2]}, {y[q:q+2]}, {acc[20*j+q:20*j+q+2]}")
    a("s_barrier")
    stamp(a, "reduce")
    e = fD[2]
    for q in range(20): a(f"v_mul_f32 {e[q]}, {f32(-math.log2(math.e))}, {y[q]}")
    for q in range(20): a(f"v_exp_f32 {e[q]}, {e[q]}")
    for q in range(20): a(f"v_add_f32 {e[q]}, 1.0, {e[q]}")
    for q in range(20): a(f"v_rcp_f32 {e[q]}, {e[q]}")
    for q in range(0, 20, 2): a(f"v_pk_mul_f32 {y[q:q+2]}, {y[q:q+2]}, {e[q:q+2]}")
    for n in range(5): a(f"ds_write_b128 {vT1}, {y[4*n:4*n+4]} offset:{n*64}")
    a("s_waitcnt lgkmcnt(0)")
    for rd in range(3):
        if rd == 2: set_exec(a, 0xffffffff)
        for q in range(2): a(f"ds_read_b128 {acc[8*rd+4*q:8*rd+4*q+4]}, {vLo[rd]} offset:{16*q}")
    set_exec(a, FULL)
    a("s_waitcnt vmcnt(0) lgkmcnt(0)")
    for rd in range(3):
        if rd == 2: set_exec(a, 0xffffffff)
        for k in range(4):
            x_, s_ = xs[4*rd+k], ss[4*rd+k]
            a(f"v_lshlrev_b32 {vT0}, 16, {x_}\nv_and_b32 {vT1}, 0xffff0000, {x_}\nv_lshlrev_b32 {vT2}, 16, {s_}\nv_and_b32 {vT3}, 0xffff0000, {s_}")
            a(f"v_fmac_f32 {vT0}, {vT2}, {acc[8*rd+2*k]}\nv_fmac_f32 {vT1}, {vT3}, {acc[8*rd+2*k+1]}")
            cvtpk(a, x_, vT0, vT1)
        a(f"buffer_store_dwordx4 {xs[4*rd:4*rd+4]}, {vXo[rd]}, {rO}, {sD} offen")
    set_exec(a, FULL)
```

```python
class Asm:
    def __init__(self):
        self.lines = []
        self.nlab = 0
    def __call__(self, s):
        for l in s.split("\n"):
            self.lines.append(l)
    def label(self, base="L"):
        self.nlab += 1
        return f"{base}_{self.nlab}"
    def text(self):
        return "\n".join(self.lines) + "\n"

def kernel_head(label):
    return f".globl {label}\n.p2align 8\n.type {label},@function\n{label}:"

def kd(label, vgpr=256, sgpr=102, accum=None):
    if accum is None:
        accum = min(256, (vgpr + 3)//4*4)
    return f""".p2align 6
.amdhsa_kernel {label}
  .amdhsa_next_free_vgpr {vgpr}
  .amdhsa_next_free_sgpr {sgpr}
  .amdhsa_accum_offset {accum}
  .amdhsa_group_segment_fixed_size 0
  .amdhsa_kernarg_size 80
  .amdhsa_user_sgpr_count 2
  .amdhsa_user_sgpr_kernarg_segment_ptr 1
  .amdhsa_system_sgpr_workgroup_id_x 1
.end_amdhsa_kernel"""

def srd(a, d, base, nbytes):
    a(f"s_mov_b32 s{d}, s{base}")
    a(f"s_mov_b32 s{d+1}, s{base+1}")
    a(f"s_mov_b32 s{d+2}, {nbytes}")
    a(f"s_mov_b32 s{d+3}, 0x00020000")
```

```python
import re

REG = re.compile(r"\b([vsa])(\d+)\b|\b([vsa])\[(\d+):(\d+)\]")
def regs_of(op):
    out = set()
    op = op.strip()
    for m in REG.finditer(op):
        if m.group(1): out.add((m.group(1), int(m.group(2))))
        else:
            for i in range(int(m.group(4)), int(m.group(5))+1): out.add((m.group(3), i))
    if re.search(r"\bvcc\b", op): out.add(("x", "vcc"))
    if re.search(r"\bexec(_lo|_hi)?\b", op): out.add(("x", "exec"))
    if re.search(r"\bm0\b", op): out.add(("x", "m0"))
    return out

TRANS = ("v_exp_f32", "v_log_f32", "v_rcp_f32", "v_rsq_f32", "v_sqrt_f32", "v_sin_f32", "v_cos_f32", "v_rcp_iflag_f32")

class I:
    __slots__ = ("text", "op", "kind", "w", "r", "A", "B", "C", "passes", "states", "dpp", "data", "trans", "lds_dma", "opsel")

def split_ops(s):
    ops, depth, cur = [], 0, ""
    for ch in s:
        if ch in "[(": depth += 1
        if ch in "])": depth -= 1
        if ch == "," and depth == 0:
            ops.append(cur); cur = ""
        else: cur += ch
    ops.append(cur)
    return [o.strip() for o in ops]

def parse(line):
    t = line.split(";")[0].strip()
    if not t or t.endswith(":") or t.startswith("."): return None
    i = I(); i.text = t
    parts = t.split(None, 1)
    op = parts[0]; i.op = op
    ops = split_ops(parts[1]) if len(parts) > 1 else []
    i.w = set(); i.r = set(); i.A = i.B = i.C = set(); i.passes = 0; i.states = 1
    i.dpp = False; i.data = set(); i.trans = False; i.lds_dma = False; i.opsel = False
    base = re.sub(r"_(e32|e64|dpp|sdwa)$", "", op)
    if op == "s_nop":
        i.kind = "nop"; i.states = int(ops[0], 0) + 1
    elif op.startswith("v_mfma"):
        i.kind = "mfma"
        i.w = regs_of(ops[0]); i.A = regs_of(ops[1]); i.B = regs_of(ops[2]); i.C = regs_of(ops[3].split()[0])
        i.r = i.A | i.B | i.C
        i.passes = 8 if "32x32x16" in op else 4 if "16x16x32" in op else None
        assert i.passes, op
    elif op.startswith("v_"):
        i.kind = "valu"
        i.trans = base in TRANS
        i.dpp = bool(re.search(r"row_|quad_perm|wave_|_dpp", t))
        i.opsel = "sdwa" in t or "dst_sel" in t
        if base.startswith("v_permlane"):
            i.w = regs_of(ops[0]) | regs_of(ops[1]); i.r = set(i.w)
        elif base.startswith("v_cmpx"):
            i.w = regs_of(ops[0]) | {("x", "exec")}; i.r = set().union(*[regs_of(o) for o in ops[1:]])
        elif base in ("v_add_co_u32", "v_sub_co_u32", "v_addc_co_u32", "v_subb_co_u32", "v_div_scale_f32", "v_mad_u64_u32"):
            i.w = regs_of(ops[0]) | regs_of(ops[1]); i.r = set().union(*[regs_of(o) for o in ops[2:]])
        elif base == "v_nop":
            pass
        else:
            i.w = regs_of(ops[0]); i.r = set().union(*[regs_of(o) for o in ops[1:]]) if len(ops) > 1 else set()
            if base in ("v_fmac_f32", "v_dot2c_f32_bf16", "v_writelane_b32") or i.dpp: i.r |= i.w
    elif op.startswith("ds_"):
        i.kind = "ds"
        if "read" in op or "permute" in op or "swizzle" in op:
            i.w = regs_of(ops[0]); i.r = set().union(*[regs_of(o) for o in ops[1:]])
            if "d16" in op: i.r |= i.w
        else:
            i.r = set().union(*[regs_of(o) for o in ops])
    elif op.startswith("buffer_") or op.startswith("global_"):
        i.kind = "vmem"
        if op in ("buffer_inv", "buffer_wbl2"):
            pass
        elif re.search(r"\blds\b", t) or "load_lds" in op:
            i.lds_dma = True; i.r = set().union(*[regs_of(o) for o in ops]) | {("x", "m0")}
        elif "load" in op:
            i.w = regs_of(ops[0]); i.r = set().union(*[regs_of(o) for o in ops[1:]])
        else:
            i.r = set().union(*[regs_of(o) for o in ops])
            d = ops[0] if op.startswith("buffer_") else ops[1]
            if "x3" in op or "x4" in op: i.data = regs_of(d)
            if "atomic" in op and "sc0" in t: i.w = regs_of(ops[0])
    elif op.startswith("s_"):
        i.kind = "salu"
        if op.startswith(("s_cmp", "s_cbranch", "s_branch", "s_waitcnt", "s_barrier", "s_endpgm", "s_setprio", "s_sleep", "s_bitcmp")):
            i.r = set().union(*[regs_of(o) for o in ops]) if ops else set()
        else:
            i.w = regs_of(ops[0]); i.r = set().union(*[regs_of(o) for o in ops[1:]]) if len(ops) > 1 else set()
            if "saveexec" in op: i.w |= {("x", "exec")}
    else:
        raise ValueError("unknown instr: " + t)
    return i

def isv(s): return {x for x in s if x[0] in "va"}
def iss(s): return {x for x in s if x[0] == "s" or x == ("x", "vcc")}

def need(p, c):
    n = 0
    if p.kind == "valu":
        wv = isv(p.w); ws = iss(p.w)
        if c.kind == "mfma" and wv & c.r: n = max(n, 2)
        if c.kind == "valu":
            if c.dpp and wv & c.r: n = max(n, 2)
            if c.op.startswith("v_permlane") and wv & c.r: n = max(n, 2)
            if c.op.startswith(("v_readlane", "v_readfirstlane")) and wv & c.r: n = max(n, 1)
            if p.trans and wv & c.r: n = max(n, 1)
            if p.opsel and wv & (c.r | c.w): n = max(n, 1)
            if ws & c.r:
                n = max(n, 4 if c.op.startswith(("v_readlane", "v_writelane", "v_div_fmas")) else 2)
            if p.op.startswith("v_dot") and wv & (c.r | c.w) and not (c.op == p.op and not (wv & (c.r - c.w))): n = max(n, 3)
        if c.kind == "vmem" and ws & c.r: n = max(n, 5)
        if c.kind == "salu" and ws & c.r: n = max(n, 2)
        if ("x", "exec") in p.w:
            if c.kind == "mfma": n = max(n, 4)
            if c.kind == "valu":
                if c.dpp: n = max(n, 5)
                if c.op.startswith(("v_readlane", "v_readfirstlane", "v_writelane", "v_permlane")): n = max(n, 4)
    if p.kind == "mfma":
        P = p.passes
        if c.kind == "mfma":
            if p.w & (c.A | c.B): n = max(n, {4: 8, 8: 12}[P])
            if p.w & c.C and not (p.w == c.C and c.passes == P): n = max(n, {4: 6, 8: 10}[P])
        elif c.kind in ("valu", "ds", "vmem"):
            if p.w & (c.r | c.w): n = max(n, {4: 8, 8: 12}[P])
            if c.kind == "valu" and p.C & c.w: n = max(n, {4: 3, 8: 7}[P])
    if p.kind == "vmem" and p.data & c.w:
        n = max(n, 2 if c.kind in ("valu", "mfma") else 1)
    if p.kind == "salu" and ("x", "m0") in p.w and (c.lds_dma or "addtid" in c.op): n = max(n, 1)
    return n

MAXD = 14
def fix(lines):
    out = []; hist = []; labels = {}
    def required(h, c):
        d = 0; req = 0
        for p in reversed(h):
            req = max(req, need(p, c) - d)
            d += p.states
            if d >= MAXD: break
        return req
    fwd = {}
    alt = []
    for ln in lines:
        t = ln.split(";")[0].strip()
        if t.endswith(":"):
            labels[t[:-1]] = len(out)
            alt = [a for a in alt] + fwd.pop(t[:-1], [])
            out.append(ln); continue
        c = parse(ln)
        if c is None:
            out.append(ln); continue
        req = max([required(hist, c)] + [required(a, c) for a in alt])
        def push(x):
            hist.append(x)
            for a in alt: a.append(x)
        if req > 0:
            n = parse(f"s_nop {req-1}"); out.append(f"s_nop {req-1}"); push(n)
        if c.op.startswith(("s_cbranch", "s_branch")):
            tgt = c.text.split()[1]
            if tgt in labels:
                h = list(hist[-MAXD:]) + [c]; extra = 0; d = 0
                for l2 in out[labels[tgt]:]:
                    c2 = parse(l2)
                    if c2 is None: continue
                    extra = max(extra, required(h, c2)); h.append(c2); d += c2.states
                    if d >= MAXD: break
                if extra > 0:
                    n = parse(f"s_nop {extra-1}"); out.append(f"s_nop {extra-1}"); push(n)
            else:
                fwd.setdefault(tgt, []).append(list(hist[-MAXD:]) + [c])
        out.append(ln); push(c)
        if c.op in ("s_branch", "s_endpgm"):
            hist = []; alt = []
        alt = [a for a in alt if True][-8:]
        if len(hist) > 64: hist = hist[-32:]
        alt = [a[-32:] for a in alt]
    return out
```

```python
from build_multi import *
def probe_kernel():
    a = Asm()
    a(kernel_head("probe_kernel"))
    a("s_memrealtime s[60:61]\ns_memtime s[24:25]")
    a("s_cmp_ge_u32 s2, 256\ns_cbranch_scc1 probe_end")
    load_kernargs(a)
    a("s_waitcnt lgkmcnt(0)\ns_memtime s[26:27]\ns_waitcnt lgkmcnt(0)")
    rs = {}
    for i, (n, p, sz) in enumerate([("x", P_X, 2621440), ("wg", P_WG, 1966080), ("wr", P_WR, 1314816), ("ws", P_WS, WS_END)]):
        rs[n] = R("s", 40+4*i, 4); mk_srd(a, rs[n], p, sz)
    a("v_lshlrev_b32 v1, 4, v0\ns_mul_i32 s3, s2, 4096")
    for i, n in enumerate(["x", "x", "wg", "wr", "ws"]):
        a(f"buffer_load_dwordx4 v[8:11], v1, {rs[n]}, s3 offen offset:{1024*(i & 1)}\ns_waitcnt vmcnt(0)\ns_memtime s[{28+2*i}:{29+2*i}]\ns_waitcnt lgkmcnt(0)")
    for i in range(1024): a(f"v_fma_f32 v{16+i%16}, v8, v9, v10")
    a("s_memtime s[38:39]\ns_waitcnt lgkmcnt(0)")
    for k in range(7):
        a(f"s_sub_u32 s3, s{26+2*k}, s{24+2*k}\ns_add_u32 s3, s3, s60\nv_mov_b32 v{2+k}, s3")
    a(f"s_lshl_b32 s3, s2, 6\ns_add_u32 s3, s3, {WS_STAMP + 8*65536}\ns_mov_b64 exec, 1")
    a(f"buffer_store_dwordx4 v[2:5], off, {rs['ws']}, s3\nbuffer_store_dwordx4 v[6:9], off, {rs['ws']}, s3 offset:16")
    a("probe_end:\ns_endpgm")
    return "\n".join(hazard.fix(a.lines)) + "\n"
o = ["aux1", "gemm1", "colfft", "rowinv", "gemm2"]
for k in range(7):
    fn = f"state_{k}.s"
    build(fn, o, spin=WS_STAMP + 8*65536 + 77*64 + 4*k)
    s = open(fn).read()
    s = s.replace("; @launch kernel=aux1_kernel", "; @launch kernel=probe_kernel grid=(256,1,1) block=(64,1,1) lds=0\n; @launch kernel=aux1_kernel")
    s = s.replace('.section .rodata,"a"\n', probe_kernel() + '.section .rodata,"a"\n' + kd("probe_kernel", 32, 64) + "\n")
    s = s.replace("s_cmp_lt_u32 s8, 10000", "s_cmp_lt_i32 s8, 10000").replace("s_mov_b32 s10, 4000", "s_mov_b32 s10, 8000")
    open(fn, "w").write(s)
```

```python
import sys, struct, math
sys.path.insert(0, "tools")
from asmlib import *
import hazard

WS_Z   = 0x0000000
WS_Y   = 0x0280000
WS_WT  = 0x0500000
WS_S   = 0x0780000
WS_H   = 0x0A00000
WS_WDP = 0x1000000
WS_ST  = 0x1200000
WS_CS  = 0x1208000
WS_FL  = 0x1220000
WS_END = 0x1900000

P_X, P_WR, P_WI, P_BX, P_WG, P_WU, P_WD, P_OUT, P_DBG, P_WS = 4, 6, 8, 10, 12, 14, 16, 18, 20, 22

def f32(x):
    return "0x%08x" % struct.unpack("<I", struct.pack("<f", x))[0]

class R:
    def __init__(self, kind, base, n=1): self.kind, self.base, self.n = kind, base, n
    def __getitem__(self, i):
        if isinstance(i, slice):
            a = i.start or 0; b = i.stop if i.stop is not None else self.n
            assert 0 <= a < b <= self.n, (a, b, self.n)
            return R(self.kind, self.base + a, b - a)
        assert 0 <= i < self.n, (i, self.n)
        return R(self.kind, self.base + i, 1)
    def __str__(self):
        return f"{self.kind}{self.base}" if self.n == 1 else f"{self.kind}[{self.base}:{self.base+self.n-1}]"
    __repr__ = __str__
    def __format__(self, spec): return str(self)

class Alloc:
    def __init__(self, kind, start, limit): self.kind, self.p, self.limit, self.hi = kind, start, limit, start
    def __call__(self, n=1, align=None):
        if align is None: align = 1 if n == 1 else (2 if self.kind == "v" else (2 if n == 2 else 4))
        self.p = (self.p + align - 1)//align*align
        r = R(self.kind, self.p, n); self.p += n
        assert self.p <= self.limit, f"out of {self.kind} regs"
        self.hi = max(self.hi, self.p)
        return r
    def mark(self): return self.p
    def reset(self, m): self.p = m

def load_kernargs(a):
    a("s_load_dwordx16 s[4:19], s[0:1], 0")
    a("s_load_dwordx4 s[20:23], s[0:1], 64")

def mk_srd(a, d, ptr, nbytes):
    a(f"s_mov_b64 {d[0:2]}, s[{ptr}:{ptr+1}]")
    a(f"s_mov_b32 {d[2]}, {nbytes}")
    a(f"s_mov_b32 {d[3]}, 0x00020000")

def set_exec(a, mask):
    if mask == (1 << 64) - 1:
        a("s_mov_b64 exec, -1")
    else:
        a(f"s_mov_b32 exec_lo, 0x{mask & 0xffffffff:x}")
        a(f"s_mov_b32 exec_hi, 0x{mask >> 32:x}")
FULL = (1 << 64) - 1
def lanemask(f): return sum(1 << l for l in range(64) if f(l))

def mfma16(a, d, A, B, C): a(f"v_mfma_f32_16x16x32_bf16 {d}, {A}, {B}, {C}")
def mfma32(a, d, A, B, C): a(f"v_mfma_f32_32x32x16_bf16 {d}, {A}, {B}, {C}")
def cvtpk(a, d, lo, hi): a(f"v_cvt_pk_bf16_f32 {d}, {lo}, {hi}")

def cmul(a, re, im, fr, fi, t0, t1, conj=False):
    a(f"v_mul_f32 {t0}, {re}, {fr}")
    a(f"v_mul_f32 {t1}, {im}, {fr}")
    if not conj:
        a(f"v_fma_f32 {t0}, -{im}, {fi}, {t0}")
        a(f"v_fmac_f32 {t1}, {re}, {fi}")
    else:
        a(f"v_fmac_f32 {t0}, {im}, {fi}")
        a(f"v_fma_f32 {t1}, -{re}, {fi}, {t1}")

WS_STAMP = 0x1280000
def stamp(a, name):
    if not getattr(a, "stamps_on", False): return
    if a.stamps_on == "ends" and name not in ("start", "end"): return
    if getattr(a, "stamp_filter", None) is not None and name not in a.stamp_filter: return
    k = len(a.stamps); a.stamps.append(name)
    assert k < 14
    a(f"{'s_memrealtime' if getattr(a, 'stamp_real', False) else 's_memtime'} s[98:99]\ns_waitcnt lgkmcnt(0)\ns_mov_b32 s{84+k}, s98")

def stamp_begin(a):
    a.stamps = []
    if not getattr(a, "stamps_on", False): return
    a("s_memrealtime s[80:81]")
    stamp(a, "start")

def stamp_end(a, rWS, sW, slot):
    if not getattr(a, "stamps_on", False): return
    a("s_waitcnt vmcnt(0)")
    stamp(a, "end")
    a("s_memrealtime s[82:83]\ns_waitcnt lgkmcnt(0)")
    a("s_mov_b64 exec, 1")
    a(f"s_lshl_b32 s3, {slot}, 2\ns_add_u32 s3, s3, {sW}\ns_lshl_b32 s3, s3, 6\ns_add_u32 s3, s3, {WS_STAMP + a.stamp_base*65536}")
    a("v_mov_b32 v2, s80\nv_mov_b32 v3, s82")
    for k in range(14): a(f"v_mov_b32 v{4+k}, s{84+min(k, len(a.stamps)-1)}")
    for q in range(4): a(f"buffer_store_dwordx4 v[{2+4*q}:{5+4*q}], off, {rWS}, s3 offset:{16*q}")
```

```python
from common import *
import k3_aux, k3_gemm, json
NAME = "recurrent_scan__spectral_gfnet__geglu_ffn__prompt_kernel"
HDR = open("recurrent_scan__spectral_gfnet__geglu_ffn__prompt.s.ref").read().split("; Override launch")[0]
SPIN = 100000
class Ctx: pass

class Sync:
    FL_EPOCH, FL_CNT, FL_GO, FL_3, FL_H = WS_FL, WS_FL + 0x1000, WS_FL + 0x8000, WS_FL + 0x10000, WS_FL + 0x18000
    def __init__(self, a, c):
        self.a, self.c = a, c
        self.rDB = c.Sg(4); self.sN, self.sCnt, self.sF = c.Sg(), c.Sg(), c.Sg()
        self.vP, self.vN, self.vQ = c.V(), c.V(), c.V()
    def setup(self):
        self.a(f"v_lshlrev_b32 {self.vQ}, 7, {self.c.vL}")
    def publish(self, part):
        a, c = self.a, self.c
        L = a.label("ep")
        a(f"s_lshl_b32 {self.sF}, {c.sid}, 2\ns_add_u32 {self.sF}, {self.sF}, {c.sW}\ns_cmp_lg_u32 {self.sF}, 1\ns_cbranch_scc1 {L}")
        if part == 0:
            a(f"s_mov_b32 {self.sF}, {self.FL_CNT}\ns_mov_b32 {self.sN}, {self.FL_EPOCH}\nv_mov_b32 {self.vN}, 0\ns_mov_b64 exec, 0x3ffffff")
            a(f"buffer_load_dword {self.vP}, off, {c.rWS}, {self.sN} sc1\nbuffer_store_dword {self.vN}, {self.vQ}, {c.rWS}, {self.sF} offen sc1\ns_mov_b64 exec, -1")
            for i in range(4): a(f"s_mov_b32 {self.sF}, {self.FL_HC + i*8192}\nbuffer_store_dword {self.vN}, {self.vQ}, {c.rWS}, {self.sF} offen sc1")
        else:
            a(f"s_mov_b32 {self.sN}, {self.FL_EPOCH}\nv_add_u32 {self.vP}, 1, {self.vP}\nv_or_b32 {self.vP}, 0x80000000, {self.vP}\ns_mov_b64 exec, 1")
            a(f"buffer_store_dword {self.vP}, off, {self.rDB}, 0 sc1\nbuffer_store_dword {self.vP}, off, {c.rWS}, {self.sN} sc1")
        a(f"s_mov_b64 exec, -1\n{L}:")
    FL_HC = WS_FL + 0x40000
    def cnt_add(self, sidx, base):
        a = self.a
        a(f"s_lshl_b32 {self.sF}, {sidx}, 7\ns_add_u32 {self.sF}, {self.sF}, {base}\ns_mov_b32 s3, 1\ns_atomic_add s3, s[{P_WS}:{P_WS+1}], {self.sF}")
    def cnt_issue(self, sidx, base):
        a = self.a
        a(f"s_lshl_b32 {self.sF}, {sidx}, 7\ns_add_u32 {self.sF}, {self.sF}, {base}\ns_load_dword s3, s[{P_WS}:{P_WS+1}], {self.sF} glc")
    def cnt_check(self, n):
        a = self.a
        L, Ld = a.label("ct"), a.label("ct")
        if self.c.opt.get("nocheck"): a("s_waitcnt lgkmcnt(0)"); return
        a(f"s_mov_b32 {self.sCnt}, {SPIN}\n{L}:\ns_waitcnt lgkmcnt(0)\ns_cmp_eq_u32 s3, {n}\ns_cbranch_scc1 {Ld}")
        a(f"s_load_dword s3, s[{P_WS}:{P_WS+1}], {self.sF} glc\ns_sub_u32 {self.sCnt}, {self.sCnt}, 1\ns_cbranch_scc0 {L}\ns_waitcnt lgkmcnt(0)\n{Ld}:")
    def tag_issue(self):
        self.a(f"buffer_load_dword {self.vN}, off, {self.rDB}, 0 sc1")
    def tag_check(self):
        a = self.a
        if self.c.opt.get("nocheck"): return
        L, Ld = a.label("tag"), a.label("tag")
        a(f"s_mov_b32 {self.sCnt}, {SPIN}\n{L}:\nv_readfirstlane_b32 {self.sN}, {self.vN}\ns_cmp_lg_u32 {self.sN}, 0\ns_cbranch_scc1 {Ld}")
        self.tag_issue()
        a(f"s_waitcnt vmcnt(0)\ns_sub_u32 {self.sCnt}, {self.sCnt}, 1\ns_cbranch_scc0 {L}\n{Ld}:")
    def flags_issue(self, base, sidx, n):
        a, c = self.a, self.c
        a(f"s_lshl_b32 {self.sF}, {sidx}, 7\ns_add_u32 {self.sF}, {self.sF}, {base}\ns_mov_b64 exec, {(1 << n) - 1 if isinstance(n, int) else n}")
        a(f"buffer_load_dword {self.vP}, {self.vQ}, {c.rWS}, {self.sF} offen sc1\ns_mov_b64 exec, -1")
    def flags_check(self, n, sleep=1):
        a, c = self.a, self.c
        if c.opt.get("nocheck"): return
        L, Ld = a.label("fl"), a.label("fl")
        a(f"s_mov_b64 exec, {(1 << n) - 1 if isinstance(n, int) else n}\ns_mov_b32 {self.sCnt}, {SPIN}\n{L}:")
        a(f"v_cmp_ne_u32 vcc, {self.sN}, {self.vP}\ns_cmp_eq_u64 vcc, 0\ns_cbranch_scc1 {Ld}")
        if sleep: a(f"s_sleep {sleep}")
        a(f"buffer_load_dword {self.vP}, {self.vQ}, {c.rWS}, {self.sF} offen sc1\ns_waitcnt vmcnt(0)")
        a(f"s_sub_u32 {self.sCnt}, {self.sCnt}, 1\ns_cbranch_scc0 {L}\n{Ld}:\ns_mov_b64 exec, -1")
    def wait_flags(self, base, sidx, n, sleep=1):
        self.flags_issue(base, sidx, n); self.a("s_waitcnt vmcnt(0)"); self.flags_check(n, sleep)
    def put_flag(self, base, sidx):
        a, c = self.a, self.c
        a(f"s_lshl_b32 {self.sF}, {sidx}, 7\ns_add_u32 {self.sF}, {self.sF}, {base}\ns_mov_b64 exec, 1")
        a(f"buffer_store_dword {self.vN}, off, {c.rWS}, {self.sF} sc1\ns_mov_b64 exec, -1")
    slot = {1: 0, 3: 1, 2: 2}
    def go_base(self, k): return self.FL_GO + self.slot[k]*1024
    def go_issue(self, k):
        a, c = self.a, self.c
        self.tag_issue()
        a(f"s_and_b32 {self.sCnt}, {c.sid}, 7\ns_lshl_b32 {self.sCnt}, {self.sCnt}, 5")
        self.flags_issue(self.go_base(k), self.sCnt, 16)
    def go_check(self, k):
        self.tag_check(); self.flags_check(16)
    def arrive(self, k, per, shard, keep=0):
        a, c = self.a, self.c
        L = a.label("arr")
        a(f"s_waitcnt vmcnt({keep})\ns_barrier")
        if not keep: stamp(a, f"drain{k}")
        if k == 1: self.tag_check()
        a(f"s_cmp_lg_u32 {c.sW}, 0\ns_cbranch_scc1 {L}")
        a(f"{shard}\ns_add_u32 {self.sF}, {self.sCnt}, {self.FL_CNT + self.slot[k]*1024}")
        if c.opt.get("satom", True):
            a(f"s_mov_b32 s3, 1\ns_atomic_add s3, s[{P_WS}:{P_WS+1}], {self.sF} glc\ns_waitcnt lgkmcnt(0)\ns_cmp_lg_u32 s3, {per-1}\ns_cbranch_scc1 {L}")
        else:
            a(f"v_mov_b32 {self.vP}, 1\ns_mov_b64 exec, 1\nbuffer_atomic_add {self.vP}, off, {c.rWS}, {self.sF} sc0 sc1\ns_waitcnt vmcnt(0)")
            a(f"v_readfirstlane_b32 {self.sF}, {self.vP}\ns_mov_b64 exec, -1\ns_cmp_lg_u32 {self.sF}, {per-1}\ns_cbranch_scc1 {L}")
        a(f"s_add_u32 {self.sF}, {self.sCnt}, {self.go_base(k)}\nv_lshlrev_b32 {self.vP}, 5, {self.vQ}\ns_mov_b64 exec, 0xff")
        a(f"buffer_store_dword {self.vN}, {self.vP}, {c.rWS}, {self.sF} offen sc1\ns_mov_b64 exec, -1\n{L}:")
    def wave_wait_go(self, k, sMask, sleep=2):
        a, c = self.a, self.c
        a(f"s_and_b32 {self.sCnt}, {c.sid}, 7\ns_lshl_b32 {self.sCnt}, {self.sCnt}, 5")
        self.wait_flags(self.go_base(k), self.sCnt, sMask, sleep)

def build(fn, stamps=False, as_list=False, **opt):
    global SPIN
    SPIN = opt.get("spin", 100000)
    a = Asm()
    a.stamps_on = stamps; a.stamp_base = 0; a.stamp_real = opt.get("real", False)
    c = Ctx(); c.opt = opt
    a(kernel_head(NAME))
    a("s_cmp_ge_u32 s2, 512\ns_cbranch_scc1 L_end")
    stamp_begin(a)
    load_kernargs(a)
    V = c.V = Alloc("v", 1, 256); Sg = c.Sg = Alloc("s", 24, 78)
    c.sW, c.vL, c.sid, c.sJQ, c.sT, c.rWS = Sg(), V(), Sg(), Sg(), Sg(), Sg(4)
    sy = c.sync = Sync(a, c)
    a(f"v_lshrrev_b32 {c.vL}, 6, v0\ns_and_b32 {c.sid}, s2, 255\nv_readfirstlane_b32 {c.sW}, {c.vL}\nv_and_b32 {c.vL}, 63, v0")
    sy.setup()
    a(f"s_and_b32 {c.sJQ}, s2, 1\ns_lshl_b32 {c.sJQ}, {c.sJQ}, 2\ns_bfe_u32 {c.sT}, s2, 0x20001\ns_add_u32 {c.sJQ}, {c.sJQ}, {c.sT}")
    def kernarg_wait():
        a("s_waitcnt lgkmcnt(0)")
        mk_srd(a, c.rWS, P_WS, WS_END); mk_srd(a, sy.rDB, P_DBG, 256)
    a("s_cmp_ge_u32 s2, 256\ns_cbranch_scc1 L_aux")
    mv, ms = V.mark(), Sg.mark()
    if opt.get("codepf", True):
        L = a.label("pf")
        a(f"s_lshr_b32 s3, s2, 3\ns_lshl_b32 {sy.sF}, {c.sW}, 8\ns_add_u32 {sy.sF}, {sy.sF}, s3\ns_cmp_ge_u32 {sy.sF}, CODE_KB\ns_cbranch_scc1 {L}")
        a(f"s_getpc_b64 s[78:79]\nL_pc:\ns_lshl_b32 s3, s3, 10\ns_sub_u32 s3, s3, L_pc-{NAME}\ns_ashr_i32 {sy.sF}, s3, 31")
        a(f"s_add_u32 s3, s3, s78\ns_addc_u32 {sy.sF}, {sy.sF}, s79")
        a(f"v_lshlrev_b32 v8, 4, {c.vL}\nv_mov_b32 v9, {sy.sF}\nv_add_co_u32 v8, vcc, s3, v8\nv_addc_co_u32 v9, vcc, 0, v9, vcc")
        a(f"global_load_dwordx4 v[16:19], v[8:9], off\n{L}:")
    a.stamp_filter = set(opt["gf"]) if opt.get("gf") else None
    k3_gemm.ffn(a, c, kernarg_wait)
    stamp_end(a, c.rWS, c.sW, c.sid)
    st_g = list(a.stamps)
    a("s_endpgm")
    a("L_aux:")
    if opt.get("aux_stop") == 0: a("s_endpgm")
    a(f"s_setprio {opt.get('prio', 2)}")
    a.stamps = a.stamps[:1]; a.stamp_base = 1
    if stamps:
        for k in range(1, 14): a(f"s_mov_b32 s{84+k}, s84")
    V.reset(mv); Sg.reset(ms)
    a.stamp_filter = set(opt.get("sf", ["x", "ln", "fft", "arr1", "arr3", "go1", "z", "fft2", "arr2", "go2", "y", "end"]))
    prep = k3_aux.Prep(a, c); ms2 = Sg.mark(); V.limit = 212
    k3_aux.aux1(a, c, kernarg_wait)
    sy.tag_issue()
    V.reset(mv); Sg.reset(ms2)
    Lr, Lq = a.label("r2"), a.label("pr")
    sh = f"s_lshl_b32 {sy.sCnt}, {c.sJQ}, 7"
    a(f"s_cmp_lt_u32 {c.sid}, 160\ns_cbranch_scc1 {Lq}")
    prep.issue()
    sy.arrive(1, 32, sh, keep=5)
    prep.issue2()
    a("s_waitcnt vmcnt(10)\ns_barrier")
    prep.run()
    sy.arrive(3, 12, sh)
    stamp(a, "arr3")
    a(f"s_branch {Lr}\n{Lq}:")
    V.reset(mv); Sg.reset(ms); V.limit = 256
    sy.arrive(1, 32, sh)
    stamp(a, "arr1")
    sM = Sg(2)
    a(f"s_lshl_b32 {sM[1]}, {c.sW}, 1\ns_lshl_b32 {sM[0]}, 3, {sM[1]}\ns_mov_b32 {sM[1]}, 0")
    lo = lambda: a("s_setprio 0") if opt.get("lowset", True) else None
    hi = lambda: a(f"s_setprio {opt.get('prio', 2)}") if opt.get("lowset", True) else None
    lo()
    k3_aux.colfft(a, c, lambda: (hi(), sy.wave_wait_go(1, sM, opt.get("sleep1", 2)), stamp(a, "go1")))
    sy.arrive(2, 16, f"s_lshr_b32 {sy.sCnt}, {c.sid}, 4\ns_lshl_b32 {sy.sCnt}, {sy.sCnt}, 7")
    stamp(a, "arr2")
    a(f"{Lr}:")
    V.reset(mv); Sg.reset(ms)
    sM = Sg(2)
    a(f"s_lshl_b32 {sM[0]}, 0x111, {c.sW}\ns_and_b32 {sM[0]}, {sM[0]}, 0x3ff\ns_mov_b32 {sM[1]}, 0")
    lo()
    sT = k3_aux.rowinv(a, c, lambda: (hi(), sy.wave_wait_go(2, sM, opt.get("sleep2", 3)), stamp(a, "go2")))
    L = a.label("f3")
    a(f"s_waitcnt vmcnt(0)\ns_barrier\ns_cmp_lg_u32 {c.sW}, 0\ns_cbranch_scc1 {L}")
    if opt.get("scnt", True):
        a(f"s_lshr_b32 {sy.sCnt}, {sT}, 1"); sy.cnt_add(sy.sCnt, sy.FL_HC + 16384)
    else: sy.put_flag(sy.FL_3, sT)
    a(f"{L}:")
    stamp_end(a, c.rWS, c.sW, c.sid)
    st_a = list(a.stamps)
    a("L_end:\ns_endpgm\nL_code_end:")
    if opt.get("strip"):
        import re as _re
        i0 = a.lines.index("L_aux:")
        keep = a.lines[:i0]
        for l in a.lines[i0:]:
            if "dma" in opt["strip"] and (l.endswith(" lds") or l.startswith("buffer_load_dwordx4")): continue
            if "st" in opt["strip"] and l.startswith("buffer_store_dwordx4") and ", off," not in l: continue
            if "mfma" in opt["strip"] and l.startswith("v_mfma"): continue
            if "sc1" in opt["strip"] and l.startswith("buffer_store"): l = l.replace("sc1", "")
            if "valu" in opt["strip"] and _re.match(r"v_(sin|cos|mul_f|add_f|sub_f|subrev_f|fma|cvt|xor)", l): continue
            if "ds" in opt["strip"] and l.startswith("ds_"): continue
            keep.append(l)
        a.lines = keep
    if opt.get("gstrip"):
        i0 = a.lines.index("L_aux:"); keep = []
        for l in a.lines[:i0]:
            g = opt["gstrip"]
            if "hst" in g and l.startswith("buffer_store_dwordx4") and "sc1" in l: continue
            if "hplain" in g and l.startswith("buffer_store_dwordx4"): l = l.replace("sc1", "")
            if "flag" in g and (l.startswith("buffer_store_dword ") or l.startswith(f"buffer_load_dword {sy.vP},")): continue
            if "wd" in g and l.startswith("buffer_load_dwordx4") and (" v11, s[" in l or " v12, s[" in l): continue
            if "ldplain" in g and l.startswith("buffer_load_dwordx4"): l = l.replace("sc1", "")
            keep.append(l)
        a.lines = keep + a.lines[i0:]
    lines = hazard.fix(a.lines)
    out = HDR + ("; @launch grid=(512,1,1) block=(256,1,1) lds=81920\n" if not as_list else f"; @launch kernel={NAME} grid=(512,1,1) block=(256,1,1) lds=81920\n")
    out += '.amdgcn_target "amdgcn-amd-amdhsa--gfx950"\n.text\n'
    out += "\n".join(lines) + "\n"
    out += '.section .rodata,"a"\n' + kd(NAME, 256, 100 if stamps else 80) + "\n"
    import subprocess, re
    open(fn, "w").write(out.replace("CODE_KB", "1"))
    subprocess.run(["clang", "-x", "assembler", "-target", "amdgcn-amd-amdhsa", "-mcpu=gfx950", "-c", fn, "-o", "_k.o"], check=True)
    sym = subprocess.run(["llvm-readelf", "-s", "_k.o"], capture_output=True, text=True).stdout
    size = int(re.search(r"([0-9a-f]{16}).*L_code_end", sym).group(1), 16)
    assert size // 1024 <= 32
    open(fn, "w").write(out.replace("CODE_KB", str(size // 1024)))
    print("code bytes", size, end=" ")
    print(fn, "vgpr", V.hi, "sgpr", Sg.hi, "lines", len(lines))
    if stamps: json.dump([("ffn", 256, st_g), ("spec", 256, st_a)], open(fn + ".json", "w"))

if __name__ == "__main__":
    build("p3.s"); build("p3_st.s", stamps=True)
```

```python
from common import *

def dma(a, m0val, voff, srd_, soff, imm=0, flag=""):
    a(m0val)
    a(f"buffer_load_dwordx4 {voff}, {srd_}, {soff} offen" + (f" offset:{imm}" if imm else "") + (f" {flag}" if flag else "") + " lds")

def wave_sum(a, rs):
    for d in ("row_shr:1", "row_shr:2", "row_shr:4", "row_shr:8"):
        for r in rs: a(f"v_add_f32_dpp {r}, {r}, {r} {d} row_mask:0xf bank_mask:0xf bound_ctrl:1")
    for r in rs: a(f"v_add_f32_dpp {r}, {r}, {r} row_bcast:15 row_mask:0xa bank_mask:0xf")
    for r in rs: a(f"v_add_f32_dpp {r}, {r}, {r} row_bcast:31 row_mask:0xc bank_mask:0xf")

def trig_pairs(a, n, ang, step, T, Cd, Sd, extra=None):
    for q in range(n):
        a(f"v_cos_f32 {T[0]}, {ang}\nv_sin_f32 {T[2]}, {ang}\nv_add_f32 {ang}, {ang}, {step}")
        a(f"v_cos_f32 {T[1]}, {ang}\nv_sin_f32 {T[3]}, {ang}")
        if q < n-1: a(f"v_add_f32 {ang}, {ang}, {extra[q] if extra and extra.get(q) else step}")
        cvtpk(a, Cd[q], T[0], T[1]); cvtpk(a, Sd[q], T[2], T[3])

L_WT, L_ROW, L_ZS, L_WD, L_CS = 0, 12288, 22784, 45312, 0
L_STAT = 22528
WS_ZW = WS_Z + 0x1400000
ST = "sc1"

def aux1(a, c, kernarg_wait):
    V, Sg, sid, sW, vL, rWS = c.V, c.Sg, c.sid, c.sW, c.vL, c.rWS
    rX, rWR = Sg(4), Sg(4)
    s0, s1, s2_, s3_, sJ2, sSt = [Sg() for _ in range(6)]
    sJQ, sT = c.sJQ, c.sT
    T = V(4); vT0, vT1, vT2, vT3 = T[0], T[1], T[2], T[3]
    xab = V(12); xa, xb = xab[0:6], xab[6:12]
    v16, v4, vG, vI, fI, fG, ang, step = [V() for _ in range(8)]
    a(f"s_lshr_b32 {sJ2}, {sid}, 3\ns_lshl_b32 {sT}, {sJQ}, 5\ns_add_u32 {sT}, {sT}, {sJ2}")
    a(f"s_lshl_b32 {s2_}, {sJQ}, 2\ns_add_u32 {s2_}, {s2_}, {sW}\ns_lshl_b32 {s2_}, {s2_}, 5\ns_add_u32 {s2_}, {s2_}, {sJ2}")
    a(f"s_mul_i32 {s2_}, {s2_}, 1280\ns_add_u32 {s3_}, {s2_}, {1024*1280}")
    a(f"v_lshlrev_b32 {v16}, 4, {vL}\nv_lshlrev_b32 {v4}, 2, {vL}\nv_lshrrev_b32 {vG}, 4, {vL}\nv_and_b32 {vI}, 15, {vL}")
    a(f"v_cvt_f32_u32 {fI}, {vI}\nv_cvt_f32_u32 {fG}, {vG}")
    C20, S20 = V(4), V(4)
    a(f"v_mul_f32 {step}, {f32(-1/20)}, {fI}\nv_mul_f32 {ang}, {f32(8.0)}, {fG}\nv_mul_f32 {ang}, {ang}, {step}")
    trig_pairs(a, 4, ang, step, T, C20, S20)
    C0, S0, nS0, C1, S1, nC1 = [V(4) for _ in range(6)]
    a(f"v_mul_f32 {step}, {f32(1/32)}, {fI}\nv_mul_f32 {fG}, 4.0, {fG}\nv_mul_f32 {ang}, {fG}, {step}")
    trig_pairs(a, 2, ang, step, T, C0, S0)
    kernarg_wait()
    mk_srd(a, rX, P_X, 2621440)
    a(f"buffer_load_dwordx4 {xa[0:4]}, {v16}, {rX}, {s2_} offen")
    a(f"buffer_load_dwordx4 {xb[0:4]}, {v16}, {rX}, {s3_} offen")
    a(f"buffer_load_dword {xa[4]}, {v4}, {rX}, {s2_} offen offset:1024")
    a(f"buffer_load_dword {xb[4]}, {v4}, {rX}, {s3_} offen offset:1024")
    def wrows():
        a(f"s_cmp_lt_u32 {sW}, 2\ns_cselect_b64 {rWR[0:2]}, s[{P_WR}:{P_WR+1}], s[{P_WI}:{P_WI+1}]\ns_mov_b32 {rWR[2]}, 1314816\ns_mov_b32 {rWR[3]}, 0x00020000")
        a(f"s_and_b32 {s1}, {sW}, 1\ns_mul_i32 {s1}, {s1}, 3072\ns_mul_i32 {s0}, {sT}, 5136\ns_add_u32 {s0}, {s0}, {s1}\ns_sub_u32 {s0}, {s0}, 656")
        a(f"v_add_u32 {vT0}, {s0}, {v16}\nv_add_u32 {vT1}, 1314816, {vT0}\nv_min_u32 {vT1}, {vT0}, {vT1}\nv_add_u32 {vT0}, 1024, {vT0}\ns_mul_i32 {s1}, {sW}, 3072")
        dma(a, f"s_add_u32 m0, {s1}, {L_WT}", vT1, rWR, 0)
        dma(a, f"s_add_u32 m0, {s1}, {L_WT + 1024}", vT0, rWR, 0)
        a(f"buffer_load_dwordx4 {vT0}, {rWR}, 0 offen offset:1024 lds")
    WL = c.opt.get("wlate", 1)
    if WL == 0: wrows()
    set_exec(a, lanemask(lambda l: l >= 32))
    for r in (C20[2], C20[3], S20[2], S20[3]): a(f"v_mov_b32 {r}, 0")
    a("s_mov_b32 exec_hi, 0xffff0000")
    for r in (C20[0], C20[1], S20[0], S20[1]): a(f"v_mov_b32 {r}, 0")
    set_exec(a, FULL)
    a(f"v_and_b32 {vT0}, 1, {vI}\nv_mul_u32_u24 {vT0}, 0x8000, {vT0}\nv_lshl_or_b32 {vT0}, {vT0}, 16, {vT0}")
    for q in range(2):
        a(f"v_xor_b32 {C0[2+q]}, {C0[q]}, {vT0}\nv_xor_b32 {S0[2+q]}, {S0[q]}, {vT0}")
    a(f"s_mov_b32 {s0}, 0x80008000\ns_brev_b32 {s1}, 1\ns_mov_b32 {s2_}, 0x8000")
    for q in range(4):
        a(f"v_xor_b32 {nS0[q]}, {s0}, {S0[q]}\nv_xor_b32 {C1[q]}, {s1}, {C0[q]}\nv_xor_b32 {S1[q]}, {s1}, {S0[q]}\nv_xor_b32 {nC1[q]}, {s2_}, {C0[q]}")
    twr, twi = V(16), V(16)
    a(f"s_lshl_b32 {s0}, {sJQ}, 1\ns_and_b32 {s1}, {sW}, 1\ns_add_u32 {s0}, {s0}, {s1}\ns_lshl_b32 {s0}, {s0}, 6\ns_add_u32 {s0}, {s0}, {sJ2}")
    a(f"s_lshr_b32 {s1}, {sW}, 1\ns_mul_i32 {s0}, {s0}, {s1}\ns_mul_i32 {s1}, {s1}, {f32(-32/2048)}")
    a(f"v_cvt_f32_u32 {vT0}, {s0}\nv_mul_f32 {vT0}, {f32(-1/2048)}, {vT0}")
    a(f"v_mul_f32 {step}, {f32(-1/640)}, {fI}\nv_fma_f32 {ang}, {fG}, {step}, {vT0}\nv_mul_f32 {vT1}, {f32(13.0)}, {step}")
    for m in range(8):
        a(f"v_add_f32 {vT0}, {s1}, {ang}")
        a(f"v_cos_f32 {twr[m]}, {ang}\nv_sin_f32 {twi[m]}, {ang}\nv_cos_f32 {twr[8+m]}, {vT0}\nv_sin_f32 {twi[8+m]}, {vT0}")
        if m < 7: a(f"v_add_f32 {ang}, {ang}, {vT1 if m == 3 else step}")
    vR, vC8, aR0, aR1, aQ0, aQ1, vA0, vA1 = [V() for _ in range(8)]
    a(f"s_mul_i32 {s0}, {sW}, 1280\nv_add_u32 {aR0}, {s0}, {v16}\nv_add_u32 {aR1}, {s0}, {v4}")
    a(f"v_bfe_u32 {vR}, {vL}, 2, 2\nv_and_b32 {vC8}, 3, {vL}\nv_lshlrev_b32 {vC8}, 3, {vC8}")
    a(f"s_lshl_b32 {s0}, {s0}, 1\nv_lshl_add_u32 {vT2}, {vR}, 6, {vC8}\nv_add_u32 {vT2}, {s0}, {vT2}")
    a(f"v_lshlrev_b32 {vT0}, 1, {vG}\nv_add_u32 {vT1}, 1, {vT0}\nv_min_u32 {vT0}, 4, {vT0}\nv_min_u32 {vT1}, 4, {vT1}")
    a(f"v_lshl_add_u32 {aQ0}, {vT0}, 8, {vT2}\nv_lshl_add_u32 {aQ1}, {vT1}, 8, {vT2}")
    a(f"s_lshr_b32 {s0}, {sW}, 1\ns_mul_i32 {s0}, {s0}, 5120\ns_and_b32 {s1}, {sW}, 1\ns_lshl_b32 {s1}, {s1}, 2\ns_add_u32 {s0}, {s0}, {s1}")
    a(f"s_add_u32 {s1}, {s0}, {L_ZS + 259*16}\ns_add_u32 {s0}, {s0}, {L_ZS - 16}")
    a(f"v_mul_u32_u24 {vT0}, 80, {vG}\nv_add_lshl_u32 {vT0}, {vT0}, {vI}, 4\nv_add_u32 {vA0}, {s0}, {vT0}\nv_sub_u32 {vA1}, {s1}, {vT0}")
    aG = V(3); vU, aS, aO = R("v", 0), V(), V()
    a(f"v_lshlrev_b32 {aG[0]}, 1, v0\nv_add_u32 {aG[0]}, 658, {aG[0]}\nv_lshlrev_b32 {aS}, 4, v0")
    a(f"v_lshrrev_b32 {vT0}, 3, v0\nv_bfe_u32 {vT1}, v0, 2, 1\nv_mul_u32_u24 {vT1}, 1280, {vT1}\nv_lshl_add_u32 {vT0}, {vT0}, 3, {vT1}\nv_lshlrev_b32 {vT0}, 3, {vT0}\nv_lshl_add_u32 {aO}, {vC8}, 1, {vT0}")
    for i in range(320): assert (i*3277) >> 16 == i//20
    for it in (1, 2):
        a(f"v_add_u32 {vT0}, {(256*it - 320) & 0xffffffff}, {vU}")
        a(f"v_mul_u32_u24 {vT1}, 3277, {vT0}\nv_lshrrev_b32 {vT1}, 16, {vT1}\nv_mul_u32_u24 {vT1}, 20, {vT1}\nv_sub_u32 {vT1}, {vT0}, {vT1}\nv_subrev_u32 {vT1}, 10, {vT1}")
        a(f"v_cmp_gt_u32 vcc, 9, {vT1}\nv_lshl_add_u32 {vT2}, {vT0}, 1, 16\nv_add_u32 {vT3}, 1284, {vT2}\nv_cndmask_b32 {aG[it]}, {vT3}, {vT2}, vcc")
        if it == 1: a(f"v_add_u32 {vT3}, 512, {aG[0]}\nv_cmp_gt_u32 vcc, 64, {vU}\nv_cndmask_b32 {aG[1]}, {aG[1]}, {vT3}, vcc")
        else: a(f"v_cmp_eq_u32 vcc, 127, {vU}\nv_cndmask_b32 {aG[2]}, {aG[2]}, {vT2}, vcc")
    da, db = V(10), V(10)
    ma, mb = V(2, 2), V(2, 2)
    if WL == 1: wrows()
    stamp(a, "trig")
    a(f"s_waitcnt vmcnt({0 if WL == 2 else 3})")
    stamp(a, "x")
    if WL == 2: wrows()
    c.sync.publish(0)
    a(f"s_mov_b32 {s2_}, 0xffff0000")
    for x, d in ((xa, da), (xb, db)):
        for k in range(5):
            a(f"v_lshlrev_b32 {d[2*k]}, 16, {x[k]}\nv_and_b32 {d[2*k+1]}, {s2_}, {x[k]}")
    a(f"v_add_f32 {ma[0]}, {da[0]}, {da[1]}\nv_add_f32 {mb[0]}, {db[0]}, {db[1]}\nv_mul_f32 {ma[1]}, {da[0]}, {da[0]}\nv_mul_f32 {mb[1]}, {db[0]}, {db[0]}")
    for k in range(1, 10):
        a(f"v_fmac_f32 {ma[1]}, {da[k]}, {da[k]}\nv_fmac_f32 {mb[1]}, {db[k]}, {db[k]}")
        if k > 1: a(f"v_add_f32 {ma[0]}, {ma[0]}, {da[k]}\nv_add_f32 {mb[0]}, {mb[0]}, {db[k]}")
    wave_sum(a, (ma[1], mb[1], ma[0], mb[0]))
    a(f"s_mov_b32 {s0}, {f32(1/640)}")
    for m_ in (ma, mb): a(f"v_mul_f32 {m_[0]}, {s0}, {m_[0]}\nv_mul_f32 {m_[1]}, {s0}, {m_[1]}")
    for m_ in (ma, mb): a(f"v_fma_f32 {m_[1]}, -{m_[0]}, {m_[0]}, {m_[1]}")
    for m_ in (ma, mb): a(f"v_max_f32 {m_[1]}, 0, {m_[1]}\nv_add_f32 {m_[1]}, {f32(1e-5)}, {m_[1]}")
    a(f"v_rsq_f32 {vT0}, {ma[1]}\nv_rsq_f32 {vT1}, {mb[1]}")
    a(f"v_readlane_b32 {s2_}, {ma[0]}, 63\nv_readlane_b32 {s3_}, {mb[0]}, 63\nv_readlane_b32 {s0}, {vT0}, 63\nv_readlane_b32 {s1}, {vT1}, 63")
    a(f"v_mov_b32 {ang}, {s2_}\nv_mov_b32 {step}, {s3_}\nv_mul_f32 {ang}, {s0}, {ang}\nv_mul_f32 {step}, {s1}, {step}")
    for k in range(10): a(f"v_fma_f32 {da[k]}, {da[k]}, {s0}, -{ang}\nv_fma_f32 {db[k]}, {db[k]}, {s1}, -{step}")
    for k in range(5):
        a(f"v_add_f32 {vT0}, {da[2*k]}, {db[2*k]}\nv_add_f32 {vT1}, {da[2*k+1]}, {db[2*k+1]}")
        a(f"v_sub_f32 {vT2}, {da[2*k]}, {db[2*k]}\nv_sub_f32 {vT3}, {da[2*k+1]}, {db[2*k+1]}")
        cvtpk(a, xa[k], vT0, vT1); cvtpk(a, xb[k], vT2, vT3)
    a(f"ds_write_b128 {aR0}, {xa[0:4]} offset:{L_ROW}\nds_write_b128 {aR0}, {xb[0:4]} offset:{L_ROW+5120}")
    a(f"ds_write_b32 {aR1}, {xa[4]} offset:{L_ROW+1024}\nds_write_b32 {aR1}, {xb[4]} offset:{L_ROW+5120+1024}")
    a(f"s_lshl_b32 {s0}, {sW}, 3\nv_mov_b32 {vT0}, {s0}")
    set_exec(a, 1 << 63)
    a(f"ds_write_b64 {vT0}, {ma} offset:{L_STAT}\nds_write_b64 {vT0}, {mb} offset:{L_STAT+32}")
    set_exec(a, FULL)
    a("s_waitcnt vmcnt(0) lgkmcnt(0)\ns_barrier")
    stamp(a, "ln")
    if "fprio" in c.opt: a(f"s_setprio {c.opt['fprio']}")
    A1 = V(16)
    for row in range(2):
        for mt in range(2):
            f = A1[8*row+4*mt: 8*row+4*mt+4]
            a(f"ds_read_b64_tr_b16 {f[0:2]}, {aQ0} offset:{L_ROW + row*1280 + mt*32}")
            a(f"ds_read_b64_tr_b16 {f[2:4]}, {aQ1} offset:{L_ROW + row*1280 + mt*32}")
    Tr, Ti = V(16), V(16)
    for row in range(2):
        for mt in range(2):
            k = 8*row + 4*mt
            a(f"s_waitcnt lgkmcnt({6 - 4*row - 2*mt})")
            mfma16(a, Tr[k:k+4], A1[k:k+4], C20, 0)
            mfma16(a, Ti[k:k+4], A1[k:k+4], S20, 0)
    wre, wim = xab, V(12)
    def grd(it):
        for e in range(4): a(f"ds_read_u16 {wre[4*it+e]}, {aG[it]} offset:{L_WT + e*1284}\nds_read_u16 {wim[4*it+e]}, {aG[it]} offset:{L_WT + 6144 + e*1284}")
    def gwr(it):
        for e in range(4): a(f"v_lshl_or_b32 {wim[4*it+e]}, {wim[4*it+e]}, 16, {wre[4*it+e]}")
        a(f"ds_write_b128 {aS}, {wim[4*it:4*it+4]} offset:{L_ZS + 10240 + it*4096}")
    grd(0)
    stamp(a, "s1")
    c.sync.publish(1)
    Br, Bi = da[0:8], db[0:8]
    Xr, Xi = A1, V(16)
    pend = []
    for row in range(2):
        for m in range(0, 8, 2):
            k = 8*row + m
            cmul(a, Tr[k], Ti[k], twr[k], twi[k], vT0, vT2)
            if pend: pend.pop(0)()
            cmul(a, Tr[k+1], Ti[k+1], twr[k+1], twi[k+1], vT1, vT3)
            if pend: pend.pop(0)()
            cvtpk(a, Br[4*row + m//2], vT0, vT1); cvtpk(a, Bi[4*row + m//2], vT2, vT3)
            if (row, m) in ((0, 4), (1, 2)): a("s_waitcnt lgkmcnt(0)"); grd(1 + row)
        br, bi = Br[4*row:4*row+4], Bi[4*row:4*row+4]
        k = 8*row
        for d, A_, B_, C_ in ((Xr[k:k+4], C0, br, 0), (Xi[k:k+4], C0, bi, 0), (Xr[k:k+4], S0, bi, 1), (Xi[k:k+4], nS0, br, 1),
                              (Xr[k+4:k+8], C1, br, 0), (Xi[k+4:k+8], nC1, bi, 0), (Xr[k+4:k+8], S1, bi, 1), (Xi[k+4:k+8], S1, br, 1)):
            pend.append(lambda d=d, A_=A_, B_=B_, C_=C_: mfma16(a, d, A_, B_, d if C_ else 0))
    for i, p in enumerate(pend):
        p()
        if i in (1, 4): gwr(i // 4)
    a("s_waitcnt lgkmcnt(2)")
    gwr(2)
    stamp(a, "gath")
    for mt in range(2):
        if mt == 1:
            set_exec(a, 1)
            for r in (Xr[4], Xi[4], Xr[12], Xi[12]): a(f"v_mul_f32 {r}, 0.5, {r}")
        for r in range(4):
            if mt == 0: ok = lambda l: (l & 15) <= 10 and not (r == 0 and l == 0)
            else:       ok = lambda l: 1 <= (l & 15) <= 9 or (r == 0 and l == 0)
            if r == 0: set_exec(a, lanemask(ok))
            if r == 1: a(f"s_mov_b32 exec_lo, 0x{lanemask(ok) & 0xffffffff:x}")
            k = 4*mt + r
            t0, t1 = (vT0, vT1) if r & 1 else (vT2, vT3)
            cvtpk(a, t0, Xr[k], Xr[8+k]); cvtpk(a, t1, Xi[k], Xi[8+k])
            o = (r if mt == 0 else 3 - r) * 80
            a(f"ds_write2_b32 {vA0 if mt == 0 else vA1}, {t0}, {t1} offset0:{o} offset1:{o+2}")
    set_exec(a, FULL)
    vt16 = aS
    a(f"s_mul_i32 {s0}, {sT}, 20480\ns_add_u32 {s0}, {s0}, {WS_ZW}")
    a("s_waitcnt lgkmcnt(0)\ns_barrier")
    stamp(a, "fft")
    zz = [twr[0:4], twr[4:8], twr[8:12], twr[12:16], twi[0:4]]
    for i in range(5): a(f"ds_read_b128 {zz[i]}, {aO} offset:{L_ZS + 2048*i}")
    for i in range(5):
        a(f"s_waitcnt lgkmcnt({4-i})")
        a(f"buffer_store_dwordx4 {zz[i]}, {vt16}, {rWS}, {s0} offen {ST}")
        if i < 4: a(f"s_add_u32 {s0}, {s0}, 4096")
    L = a.label("stat")
    a(f"s_cmp_lg_u32 {sW}, 3\ns_cbranch_scc1 {L}\nds_read_b128 {T}, {v16} offset:{L_STAT}")
    a(f"s_lshl_b32 {sSt}, {sT}, 7\ns_add_u32 {sSt}, {sSt}, {WS_ST}\ns_mov_b64 exec, 0xff\ns_waitcnt lgkmcnt(0)")
    a(f"buffer_store_dwordx4 {T}, {v16}, {rWS}, {sSt} offen {ST}\ns_mov_b64 exec, -1\n{L}:")
    stamp(a, "st")


class Prep:
    def __init__(self, a, c):
        self.a, self.c = a, c
        self.rD, self.rC = c.Sg(4), c.Sg(4)
        self.sP, self.sCo, self.s0, self.s1 = c.Sg(), c.Sg(), c.Sg(), c.Sg()
        self.cs = R("v", 216, 40); self.t = R("v", 212, 4)
    def issue(self):
        a, c = self.a, self.c; sW, vL = c.sW, c.vL; s0, s1, sP, sCo = self.s0, self.s1, self.sP, self.sCo
        t0, t1, t2 = self.t[0], self.t[1], self.t[2]
        a(f"s_sub_u32 {sP}, {c.sid}, 160")
        mk_srd(a, self.rD, P_WD, 1966080)
        a(f"s_lshr_b32 {s0}, {sP}, 1\ns_lshl_b32 {s0}, {s0}, 2\ns_add_u32 {s0}, {s0}, {sW}\ns_lshl_b32 {s0}, {s0}, 4\ns_and_b32 {s1}, {sP}, 1\ns_add_u32 {s0}, {s0}, {s1}\ns_mul_i32 {s0}, {s0}, 640")
        a(f"s_mul_i32 {s1}, {sW}, 5120")
        for i in range(320): assert (i*1639) >> 16 == i//40
        for i in range(5):
            a(f"v_add_u32 {t0}, {64*i}, {vL}\nv_mul_u32_u24 {t1}, 1639, {t0}\nv_lshrrev_b32 {t1}, 16, {t1}\nv_mul_u32_u24 {t1}, 40, {t1}\nv_add_lshl_u32 {t0}, {t0}, {t1}, 4")
            dma(a, f"s_add_u32 m0, {s1}, {L_WD + i*1024}", t0, self.rD, s0)
    def issue2(self):
        a, c = self.a, self.c; sW, vL = c.sW, c.vL; s0, s1, sP, sCo = self.s0, self.s1, self.sP, self.sCo
        t0, t1, t2 = self.t[0], self.t[1], self.t[2]
        a(f"s_lshr_b32 {s0}, {sP}, 3\ns_cmp_lt_u32 {s0}, 6\ns_cselect_b64 {self.rC[0:2]}, s[{P_WG}:{P_WG+1}], s[{P_WU}:{P_WU+1}]\ns_cselect_b32 {s1}, 0, 6\ns_cselect_b32 {sCo}, 0, 6144")
        a(f"s_mov_b32 {self.rC[2]}, 1966080\ns_mov_b32 {self.rC[3]}, 0x00020000")
        a(f"s_sub_u32 {s0}, {s0}, {s1}\ns_and_b32 {s1}, {sP}, 6\ns_mul_i32 {s1}, {s1}, 3\ns_add_u32 {s0}, {s0}, {s1}\ns_lshl_b32 {s0}, {s0}, 7")
        a(f"s_add_u32 {sCo}, {sCo}, {s0}\ns_add_u32 {sCo}, {sCo}, {s0}\ns_and_b32 {s1}, {sP}, 1\ns_mul_i32 {s1}, {s1}, 12288\ns_add_u32 {sCo}, {sCo}, {s1}")
        a(f"s_mul_i32 {s1}, {s1}, 80\ns_add_u32 {s0}, {s0}, {s1}\ns_mul_i32 {s1}, {sW}, {8*3072}\ns_add_u32 {s0}, {s0}, {s1}")
        a(f"v_lshrrev_b32 {t0}, 3, {vL}\nv_mul_u32_u24 {t0}, 192, {t0}\nv_and_b32 {t1}, 7, {vL}\nv_add_lshl_u32 {t0}, {t0}, {t1}, 4")
        for i in range(10):
            a(f"buffer_load_dwordx4 {self.cs[4*i:4*i+4]}, {t0}, {self.rC}, {s0} offen")
            if i < 9: a(f"s_add_u32 {s0}, {s0}, {32*3072}")
    def run(self):
        a, c = self.a, self.c; V, sW, vL, rWS = c.V, c.sW, c.vL, c.rWS; s0, s1, sP, sCo = self.s0, self.s1, self.sP, self.sCo
        t0, t1, t2, t3 = [self.t[i] for i in range(4)]
        wd = V(20); sel = V(4); d = V(4); v16 = V(); s2_ = c.Sg()
        a(f"v_lshrrev_b32 {t0}, 5, {vL}\nv_bfe_u32 {t1}, {vL}, 2, 3\nv_lshl_add_u32 {t0}, {t0}, 4, {t1}\nv_mul_u32_u24 {t0}, 640, {t0}")
        a(f"v_and_b32 {t1}, 3, {vL}\nv_lshl_add_u32 {t0}, {t1}, 3, {t0}\ns_mul_i32 {s0}, {sW}, 160\nv_add_u32 {t0}, {s0}, {t0}")
        for f in range(5):
            for n in range(2): a(f"ds_read_b64_tr_b16 {wd[4*f+2*n:4*f+2*n+2]}, {t0} offset:{L_WD + f*32 + n*5120}")
        a(f"v_and_b32 {t1}, 15, {vL}\nv_and_b32 {t2}, 1, {vL}\nv_lshlrev_b32 {t2}, 4, {t2}\nv_mov_b32 {t3}, 0x3f80\nv_lshlrev_b32 {t2}, {t2}, {t3}\nv_lshrrev_b32 {t1}, 1, {t1}")
        for q in range(4): a(f"v_cmp_eq_u32 vcc, {q}, {t1}\nv_cndmask_b32 {sel[q]}, 0, {t2}, vcc")
        a(f"v_lshlrev_b32 {v16}, 4, {vL}")
        a(f"s_and_b32 {s0}, {sP}, 1\ns_lshl_b32 {s0}, {s0}, 2\ns_add_u32 {s0}, {s0}, {sW}\ns_mul_i32 {s0}, {s0}, 5\ns_lshr_b32 {sP}, {sP}, 1\ns_lshl_b32 {sP}, {sP}, 12\ns_add_u32 {sP}, {sP}, {WS_WDP}")
        for f in range(5):
            a(f"s_lshr_b32 {s1}, {s0}, 2\ns_mul_i32 {s1}, {s1}, {48*4 - 4}\ns_add_u32 {s1}, {s1}, {s0}\ns_lshl_b32 {s1}, {s1}, 10\ns_add_u32 {s1}, {s1}, {sP}")
            a(f"s_waitcnt lgkmcnt({8-2*f})")
            a(f"buffer_store_dwordx4 {wd[4*f:4*f+4]}, {v16}, {rWS}, {s1} offen {ST}")
            if f < 4: a(f"s_add_u32 {s0}, {s0}, 1")
        a("s_waitcnt vmcnt(5)")
        for i in range(10): mfma16(a, d, sel, self.cs[4*i:4*i+4], d if i else 0)
        a(f"v_and_b32 {t1}, 15, {vL}\nv_lshrrev_b32 {t2}, 4, {vL}\nv_lshl_add_u32 {t1}, {t1}, 1, {t2}\ns_lshl_b32 {s0}, {sW}, 9\nv_lshl_add_u32 {t1}, {t1}, 4, {s0}")
        a(f"s_mov_b32 exec_hi, 0\nds_write_b128 {t1}, {d} offset:{L_CS}\ns_mov_b32 exec_hi, -1\nv_lshlrev_b32 {t0}, 2, {vL}")
        a("s_waitcnt lgkmcnt(0)\ns_barrier")
        L = a.label("cs")
        a(f"s_cmp_lg_u32 {sW}, 3\ns_cbranch_scc1 {L}")
        q8 = self.cs[0:8]
        for k in range(4): a(f"ds_read2st64_b32 {q8[2*k:2*k+2]}, {t0} offset0:{L_CS//256 + 2*k} offset1:{L_CS//256 + 2*k + 1}")
        a(f"s_add_u32 {sCo}, {sCo}, {WS_CS}\ns_waitcnt lgkmcnt(0)")
        for k in range(1, 8): a(f"v_add_f32 {q8[0]}, {q8[0]}, {q8[k]}")
        a(f"buffer_store_dword {q8[0]}, {t0}, {rWS}, {sCo} offen {ST}\n{L}:")


def colfft(a, c, wait_ready):
    V, Sg, sid, sW, vL, rWS = c.V, c.Sg, c.sid, c.sW, c.vL, c.rWS
    s0, s1 = Sg(), Sg()
    T = V(4); vT0, vT1, vT2, vT3 = T[0], T[1], T[2], T[3]
    C, S_, nS = V(8), V(8), V(8)
    twr, twi = V(16), V(16)
    fL, fH, ang, step, s4 = [V() for _ in range(5)]
    a(f"v_and_b32 {vT0}, 31, {vL}\nv_cvt_f32_u32 {fL}, {vT0}\nv_lshrrev_b32 {vT1}, 5, {vL}\nv_cvt_f32_u32 {fH}, {vT1}\nv_mul_f32 {fH}, 4.0, {fH}")
    a(f"v_mul_f32 {step}, {f32(1/32)}, {fL}\nv_mul_f32 {ang}, {fH}, {step}\nv_mul_f32 {s4}, {f32(5.0)}, {step}")
    trig_pairs(a, 4, ang, step, T, C, S_, {1: s4})
    a(f"v_and_b32 {vT0}, 1, {vL}\nv_mul_u32_u24 {vT0}, 0x8000, {vT0}\nv_lshl_or_b32 {vT0}, {vT0}, 16, {vT0}\ns_mov_b32 {s0}, 0x80008000")
    for q in range(4): a(f"v_xor_b32 {C[4+q]}, {C[q]}, {vT0}\nv_xor_b32 {S_[4+q]}, {S_[q]}, {vT0}")
    for q in range(8): a(f"v_xor_b32 {nS[q]}, {s0}, {S_[q]}")
    a(f"v_mul_f32 {step}, {f32(-1/1024)}, {fL}\nv_mul_f32 {ang}, {fH}, {step}\nv_mul_f32 {s4}, {f32(5.0)}, {step}")
    for r in range(16):
        a(f"v_cos_f32 {twr[r]}, {ang}\nv_sin_f32 {twi[r]}, {ang}")
        if r < 15: a(f"v_add_f32 {ang}, {ang}, {s4 if r & 3 == 3 else step}")
    vZ, vA, vA8, vAw, vRd, vt16, vAo = fL, fH, ang, step, s4, V(), V()
    a(f"v_lshrrev_b32 {vT0}, 3, {vL}\nv_xor_b32 {vT1}, {vT0}, {vL}\nv_and_b32 {vT2}, 7, {vT1}\nv_mul_u32_u24 {vT0}, 1280, {vT0}\nv_add_lshl_u32 {vZ}, {vT0}, {vT2}, 4")
    a(f"v_and_b32 {vT1}, 3, {vT1}\nv_and_b32 {vT0}, -4, v0\nv_add_lshl_u32 {vRd}, {vT0}, {vT1}, 4\nv_lshlrev_b32 {vt16}, 4, v0")
    a(f"v_xor_b32 {vT0}, {sW}, {vL}\nv_and_b32 {vT0}, 7, {vT0}\nv_lshl_add_u32 {vT0}, {vL}, 3, {vT0}\nv_lshlrev_b32 {vA}, 4, {vT0}\nv_add_u32 {vA8}, 8, {vA}")
    a(f"v_lshrrev_b32 {vT0}, 1, {vL}\nv_xor_b32 {vT0}, {sW}, {vT0}\nv_and_b32 {vT0}, 3, {vT0}\nv_lshl_add_u32 {vT0}, {vL}, 2, {vT0}\nv_lshlrev_b32 {vAo}, 4, {vT0}")
    a(f"s_add_u32 {s0}, {sW}, 4\nv_bfe_u32 {vT0}, {vL}, 2, 3\nv_xor_b32 {vT1}, {s0}, {vT0}\nv_lshl_add_u32 {vT0}, {vT0}, 3, {vT1}\nv_and_b32 {vT1}, 32, {vL}")
    a(f"v_lshl_add_u32 {vT0}, {vT1}, 3, {vT0}\nv_and_b32 {vT1}, 3, {vL}\nv_lshl_add_u32 {vT0}, {vT0}, 2, {vT1}\nv_lshlrev_b32 {vAw}, 2, {vT0}")
    a(f"s_mul_i32 {s0}, {sW}, {64*20480}\ns_lshl_b32 {s1}, {sid}, 7\ns_add_u32 {s0}, {s0}, {s1}\ns_add_u32 {s0}, {s0}, {WS_ZW}\ns_lshl_b32 {s1}, {sW}, 13")
    wait_ready()
    for i in range(8):
        dma(a, f"s_add_u32 m0, {s1}, {i*1024}", vZ, rWS, s0, flag="sc1")
        if i < 7: a(f"s_add_u32 {s0}, {s0}, {8*20480}")
    W = V(16, 4)
    Pr, Pi = V(8), V(8)
    D = [(V(16), V(16)), (V(16), V(16))]
    wr = V(16)
    a(f"s_lshl_b32 {s0}, {sid}, 14\ns_add_u32 {s0}, {s0}, {WS_Y}\ns_mov_b32 {s1}, 0xffff0000")
    a("s_waitcnt vmcnt(0)\ns_barrier")
    stamp(a, "z")
    if "cprio" in c.opt: a(f"s_setprio {c.opt['cprio']}")
    for s in range(2):
        a(f"ds_read2st64_b64 {Pr[4*s:4*s+4]}, {vA} offset0:{32*s} offset1:{32*s+16}")
        a(f"ds_read2st64_b64 {Pi[4*s:4*s+4]}, {vA8} offset0:{32*s} offset1:{32*s+16}")
    for r in range(0, 16, 2):
        o = (8*(r >> 2) + (r & 3))*4
        a(f"ds_read2st64_b32 {W[r:r+2]}, {vAw} offset0:{o} offset1:{o+4}")
    def half(k, s):
        Dr, Di = D[k & 1]; dataA = (k & 1) == 0
        Sp, Sm = (nS, S_) if k >= 2 else (S_, nS)
        sl = slice(4*s, 4*s+4); out = []
        for d, dat, mat, first in ((Dr, Pr, C, s == 0), (Di, Pi, C, s == 0), (Dr, Pi, Sp, False), (Di, Pr, Sm, False)):
            A_, B_ = (dat[sl], mat[sl]) if dataA else (mat[sl], dat[sl])
            out.append(lambda d=d, A_=A_, B_=B_, first=first: mfma32(a, d, A_, B_, 0 if first else d))
        return out
    a("s_waitcnt lgkmcnt(10)")
    for m in half(0, 0): m()
    a("s_waitcnt lgkmcnt(8)")
    for i, m in enumerate(half(0, 1)): m()
    a("s_waitcnt lgkmcnt(0)")
    for r in range(6): a(f"v_lshlrev_b32 {wr[r]}, 16, {W[r]}\nv_and_b32 {W[r]}, {s1}, {W[r]}")
    for k in range(3):
        Dr, Di = D[k & 1]
        fr, fi = (wr, W) if k == 1 else (twr, twi)
        pend = []
        for r in range(0, 16, 2):
            if r == 8: pend = half(k+1, 0)
            cmul(a, Dr[r], Di[r], fr[r], fi[r], vT0, vT2, k == 2)
            if pend: pend.pop(0)()
            cmul(a, Dr[r+1], Di[r+1], fr[r+1], fi[r+1], vT1, vT3, k == 2)
            cvtpk(a, Pr[r//2], vT0, vT1); cvtpk(a, Pi[r//2], vT2, vT3)
        for i, m in enumerate(half(k+1, 1)):
            m()
            if k == 0 and i >= 2:
                for r in range(6 + 5*(i-2), 11 + 5*(i-2)): a(f"v_lshlrev_b32 {wr[r]}, 16, {W[r]}\nv_and_b32 {W[r]}, {s1}, {W[r]}")
    stamp(a, "fft2")
    Dr, Di = D[1]
    for R4 in range(4):
        o = W[4*R4:4*R4+4]
        cvtpk(a, o[0], Dr[4*R4], Dr[4*R4+1]); cvtpk(a, o[1], Dr[4*R4+2], Dr[4*R4+3])
        cvtpk(a, o[2], Di[4*R4], Di[4*R4+1]); cvtpk(a, o[3], Di[4*R4+2], Di[4*R4+3])
        a(f"ds_write_b128 {vAo}, {o} offset:{32768 + R4*4096}")
    a("s_waitcnt lgkmcnt(0)\ns_barrier")
    for i in range(4): a(f"ds_read_b128 {W[4*i:4*i+4]}, {vRd} offset:{32768 + i*4096}")
    for i in range(4):
        a(f"s_waitcnt lgkmcnt({3-i})")
        a(f"buffer_store_dwordx4 {W[4*i:4*i+4]}, {vt16}, {rWS}, {s0} offen {ST}")
        if i < 3: a(f"s_add_u32 {s0}, {s0}, 4096")


WS_SX = WS_S + 2048*1024
def rowinv(a, c, wait_ready, LB=256):
    V, Sg, sid, sW, vL, rWS = c.V, c.Sg, c.sid, c.sW, c.vL, c.rWS
    s0, s1, s2_, s3_, sH, sP = [Sg() for _ in range(6)]
    sT = c.sT
    T = V(4); vT0, vT1, vT2, vT3 = T[0], T[1], T[2], T[3]
    L_Y, L_ZERO, L_O = LB, LB + 10240, LB + 10496
    RS = 20*144
    a(f"s_and_b32 {sH}, {sW}, 1\ns_lshr_b32 {sP}, {sW}, 1")
    vG, vI, fG, fI, fD = [V() for _ in range(5)]
    a(f"v_lshrrev_b32 {vG}, 4, {vL}\nv_and_b32 {vI}, 15, {vL}\nv_cvt_f32_u32 {fG}, {vG}\nv_cvt_f32_u32 {fI}, {vI}")
    a(f"s_lshl_b32 {s0}, {sH}, 4\nv_add_u32 {vT0}, {s0}, {vI}\nv_cvt_f32_u32 {fD}, {vT0}")
    A2 = V(16); O = V(32, 4)
    for q in range(4): a(f"v_mov_b32 {O[q]}, 0\nv_mov_b32 {A2[4*q+3]}, 0")
    a(f"ds_write_b128 {O[0]}, {O[0:4]} offset:{L_ZERO}")
    C, S_, mS, sC = V(4), V(4), V(4), V(4)
    ang, step = V(), V()
    a(f"v_mul_f32 {step}, {f32(1/32)}, {fD}\nv_mul_f32 {ang}, {f32(8.0)}, {fG}\nv_mul_f32 {ang}, {ang}, {step}")
    trig_pairs(a, 4, ang, step, T, C, S_)
    a(f"v_lshrrev_b32 {vT0}, 5, {vL}\nv_mul_u32_u24 {vT0}, 0x8000, {vT0}\nv_lshl_or_b32 {vT0}, {vT0}, 16, {vT0}\nv_xor_b32 {vT1}, 0x80008000, {vT0}")
    for q in range(4): a(f"v_xor_b32 {sC[q]}, {C[q]}, {vT0}\nv_xor_b32 {mS[q]}, {S_[q]}, {vT1}")
    M = V(8)
    a(f"s_mov_b32 {s0}, {f32(2.0/(640*2048))}")
    for nt in range(2):
        if nt == 0: a(f"v_mul_f32 {step}, {f32(-1/20)}, {fI}")
        else: a(f"v_add_f32 {step}, {f32(-16/20)}, {step}")
        a(f"v_mul_f32 {ang}, {fG}, {step}")
        for t in range(3):
            a(f"v_cos_f32 {vT0}, {ang}\nv_sin_f32 {vT1}, {ang}")
            if t < 2: a(f"v_fmac_f32 {ang}, 4.0, {step}")
            a(f"v_mul_f32 {vT0}, {s0}, {vT0}\nv_mul_f32 {vT1}, {s0}, {vT1}")
            cvtpk(a, M[4*nt+t], vT0, vT1)
        a(f"v_mov_b32 {M[4*nt+3]}, 0")
    twr, twi = V(12), V(12)
    a(f"s_lshr_b32 {s0}, {sT}, 5\ns_mul_i32 {s0}, {s0}, 96\ns_add_u32 {s0}, {s0}, {sT}\ns_mul_i32 {s0}, {s0}, {sP}\ns_mul_i32 {s1}, {sP}, {f32(32/2048)}")
    a(f"v_cvt_f32_u32 {vT0}, {s0}\nv_mul_f32 {vT0}, {f32(1/2048)}, {vT0}")
    a(f"v_mul_f32 {step}, {f32(1/640)}, {fD}\nv_fma_f32 {ang}, {fG}, {step}, {vT0}")
    for t in range(3):
        for r in range(4):
            src = ang if r == 0 else vT0
            a(f"v_cos_f32 {twr[4*t+r]}, {src}\nv_sin_f32 {twi[4*t+r]}, {src}")
            if r < 3: a(f"v_add_f32 {vT0}, {s1}, {src}")
        if t < 2: a(f"v_fmac_f32 {ang}, 4.0, {step}")
    adr = V(6)
    a(f"v_bfe_u32 {vT0}, {vL}, 2, 2\nv_lshl_add_u32 {vT0}, {vG}, 3, {vT0}\nv_mul_u32_u24 {vT0}, 20, {vT0}\nv_and_b32 {vT1}, 3, {vL}\nv_add_lshl_u32 {vT0}, {vT0}, {vT1}, 4")
    a(f"s_mul_i32 {s0}, {sP}, 5120\ns_add_u32 {s1}, {s0}, {L_Y + 639*16}\ns_add_u32 {s0}, {s0}, {L_Y - 16}")
    a(f"v_add_u32 {vT2}, {s0}, {vT0}\nv_mov_b32 {vT3}, 64\ns_mov_b32 exec_lo, 0")
    a(f"v_sub_u32 {vT2}, {s1}, {vT0}\nv_mov_b32 {vT3}, 0xffffffc0\ns_mov_b32 exec_lo, -1")
    for t in range(3):
        for h in range(2): a(f"v_mad_i32_i24 {adr[2*t+h]}, {vT3}, {20*h + t}, {vT2}")
    for t in (0, 2):
        for h in range(2):
            def bad(l):
                k1 = 4*t + (l & 3); k2 = 8*(l >> 4) + 4*h + ((l >> 2) & 3)
                ok = (k1 <= 10 and (k1, k2) != (0, 0)) if k2 < 16 else (1 <= k1 <= 9 or (k1, k2) == (0, 16))
                return not ok
            set_exec(a, lanemask(bad))
            a(f"v_mov_b32 {adr[2*t+h]}, {L_ZERO}")
    set_exec(a, FULL)
    vO, vY, vB0, vB1, v16, vE = V(), fG, fI, fD, ang, step
    a(f"s_mul_i32 {s0}, {sP}, {4*RS}\ns_lshl_b32 {s1}, {sH}, 6\ns_add_u32 {s0}, {s0}, {s1}")
    a(f"v_mul_u32_u24 {vO}, 144, {vI}\nv_lshl_add_u32 {vO}, {vG}, 4, {vO}\nv_add_u32 {vO}, {s0}, {vO}")
    a(f"v_lshrrev_b32 {vT0}, 2, {vL}\nv_lshlrev_b32 {vT2}, 10, {vT0}\nv_add_lshl_u32 {vY}, {vT2}, {vT1}, 4")
    a(f"s_mul_i32 {s1}, {sW}, {RS}\nv_mul_u32_u24 {vT0}, 144, {vT0}\nv_lshl_add_u32 {vT0}, {vT1}, 5, {vT0}\nv_add_u32 {vB0}, {s1}, {vT0}")
    a(f"v_bfe_u32 {vT0}, {vL}, 1, 2\nv_mul_u32_u24 {vT0}, {RS}, {vT0}\nv_mul_u32_u24 {vT2}, 144, {vG}\nv_bfe_u32 {vT3}, {vL}, 3, 1\nv_lshlrev_b32 {vT3}, 6, {vT3}")
    a(f"v_add3_u32 {vT0}, {vT0}, {vT2}, {vT3}\nv_and_b32 {vT2}, 1, {vL}\nv_lshl_add_u32 {vB1}, {vT2}, 5, {vT0}")
    a(f"v_lshlrev_b32 {v16}, 4, {vL}\nv_lshrrev_b32 {vT0}, 3, {vL}\nv_lshlrev_b32 {vT0}, 12, {vT0}\nv_and_b32 {vT2}, 7, {vL}\nv_add_lshl_u32 {vE}, {vT0}, {vT2}, 4")
    a(f"s_lshl_b32 {s0}, {sT}, 6\ns_lshl_b32 {s1}, {sW}, 18\ns_add_u32 {s0}, {s0}, {s1}\ns_add_u32 {s0}, {s0}, {WS_Y}\ns_lshl_b32 {s1}, {sW}, 10")
    a(f"s_lshl_b32 {s2_}, {sT}, 13\ns_add_u32 {s2_}, {s2_}, {s1}\ns_add_u32 {s2_}, {s2_}, {WS_S}\ns_add_u32 {s3_}, {s2_}, 4096")
    wait_ready()
    L = a.label("r2skip")
    for i in range(3):
        if i == 2: a(f"s_cmp_ge_u32 {sW}, 2\ns_cbranch_scc1 {L}")
        dma(a, f"s_add_u32 m0, {s1}, {L_Y + i*4096}", vY, rWS, s0, flag="sc1")
        if i < 2: a(f"s_add_u32 {s0}, {s0}, {1 << 20}")
    a(f"{L}:")
    a(f"s_lshl_b32 {s0}, {sT}, 8\ns_add_u32 {s0}, {s0}, {WS_SX}")
    a("s_waitcnt vmcnt(0) lgkmcnt(0)\ns_barrier")
    stamp(a, "y")
    if "rprio" in c.opt: a(f"s_setprio {c.opt['rprio']}")
    Ar, Ai = O[0:12], O[12:24]
    for t in range(3):
        for h in range(2): a(f"ds_read_b64_tr_b16 {Ar[4*t+2*h:4*t+2*h+2]}, {adr[2*t+h]}")
        for h in range(2): a(f"ds_read_b64_tr_b16 {Ai[4*t+2*h:4*t+2*h+2]}, {adr[2*t+h]} offset:8")
    Tr, Ti = V(12), V(12)
    for t in range(3):
        sl = slice(4*t, 4*t+4)
        a(f"s_waitcnt lgkmcnt({8-4*t})")
        mfma16(a, Tr[sl], Ar[sl], C, 0);       mfma16(a, Ti[sl], Ar[sl], S_, 0)
        mfma16(a, Tr[sl], Ai[sl], mS, Tr[sl]); mfma16(a, Ti[sl], Ai[sl], sC, Ti[sl])
    pend = []
    for r in range(4):
        for t in range(3):
            t0, t1 = (vT0, vT1) if t & 1 else (vT2, vT3)
            cmul(a, Tr[4*t+r], Ti[4*t+r], twr[4*t+r], twi[4*t+r], t0, t1)
            if pend: pend.pop(0)()
            cvtpk(a, A2[4*r+t], t0, t1)
        pend = [lambda r=r, nt=nt: mfma16(a, O[8*r+4*nt:8*r+4*nt+4], A2[4*r:4*r+4], M[4*nt:4*nt+4], 0) for nt in range(2)]
    for p in pend: p()
    for r in range(4): a(f"ds_write_b128 {vO}, {O[8*r:8*r+4]} offset:{L_O + r*RS}")
    set_exec(a, lanemask(lambda l: (l & 15) < 4))
    for r in range(4): a(f"ds_write_b128 {vO}, {O[8*r+4:8*r+8]} offset:{L_O + r*RS + 16*144}")
    set_exec(a, FULL)
    a("s_waitcnt lgkmcnt(0)\ns_barrier")
    L = a.label("r2x")
    for rd in range(2):
        if rd: a(f"s_cmp_lg_u32 {sW}, 3\ns_cbranch_scc1 {L}")
        Q = O[16*rd:16*rd+16]
        for p in range(2):
            for q in range(2): a(f"ds_read_b128 {Q[8*p+4*q:8*p+4*q+4]}, {vB1 if rd else vB0} offset:{L_O + p*4*RS + q*16 + rd*16*144}")
        a("s_waitcnt lgkmcnt(0)")
        o0, o1 = A2[8*rd:8*rd+4], A2[8*rd+4:8*rd+8]
        for k in range(4):
            a(f"v_add_f32 {vT0}, {Q[2*k]}, {Q[8+2*k]}\nv_add_f32 {vT1}, {Q[2*k+1]}, {Q[9+2*k]}")
            a(f"v_sub_f32 {vT2}, {Q[2*k]}, {Q[8+2*k]}\nv_sub_f32 {vT3}, {Q[2*k+1]}, {Q[9+2*k]}")
            cvtpk(a, o0[k], vT0, vT1); cvtpk(a, o1[k], vT2, vT3)
        if rd == 0:
            a(f"buffer_store_dwordx4 {o0}, {v16}, {rWS}, {s2_} offen {ST}")
            a(f"buffer_store_dwordx4 {o1}, {v16}, {rWS}, {s3_} offen {ST}")
        else:
            a(f"buffer_store_dwordx4 {o0}, {vE}, {rWS}, {s0} offen {ST}")
            a(f"buffer_store_dwordx4 {o1}, {vE}, {rWS}, {s0} offen offset:128 {ST}")
    a(f"{L}:")
    return sT
```

```python
from common import *
from k3_aux import dma, WS_SX

LW, LX = 0, 49152
K0 = -2.0 * math.sqrt(2.0/math.pi) * math.log2(math.e)
K1 = K0 * 0.044715

class VM:
    def __init__(self, a): self.a, self.q = a, []
    def issue(self, text, tag=None): self.a(text); self.q.append(tag)
    def note(self, tag=None): self.q.append(tag)
    def wait(self, *tags):
        idx = [i for i, t in enumerate(self.q) if t in tags]
        if not idx: return
        n = len(self.q) - 1 - max(idx)
        self.a(f"s_waitcnt vmcnt({min(n, 63)})")
        self.q = self.q[len(self.q) - min(n, 63):] if n else []
    def drained(self): self.q = []

def ffn(a, c, kernarg_wait):
    V, Sg, sid, sW, vL, rWS, sy = c.V, c.Sg, c.sid, c.sW, c.vL, c.rWS, c.sync
    rX, rW = Sg(4), Sg(4)
    s0, s1, sRB, sFB, sC, sXo, sWo, sWo1, sXb, sWb, sCnt, sMX, sMW, sWm, sWn, sR, sCT = [Sg() for _ in range(17)]
    T = V(4); vT0, vT1, vT2, vT3 = T[0], T[1], T[2], T[3]
    vHa, vDa, vEa = V(), V(), V()
    assert V.mark() <= 16
    WD = [R("v", 16 + 20*i, 20) for i in range(5)]
    acc = R("v", 116, 96)
    fW = [R("v", 212, 12), R("v", 232, 12)]; fX = [R("v", 224, 8), R("v", 244, 8)]
    vW, vX, aX, aW = WD[4][0:3], WD[4][4:6], R("v", 252, 4), WD[4][6:8]
    V.hi = 256
    a(f"s_and_b32 {s0}, {sid}, 1\ns_lshl_b32 {s0}, {s0}, 3\ns_bfe_u32 {s1}, {sid}, 0x30003\ns_add_u32 {sRB}, {s0}, {s1}")
    a(f"s_and_b32 {s0}, {sid}, 6\ns_lshl_b32 {s0}, {s0}, 1\ns_lshr_b32 {sFB}, {sid}, 6\ns_mul_i32 {sC}, {sFB}, 3\ns_add_u32 {sFB}, {sFB}, {s0}")
    a(f"s_add_u32 {sC}, {sC}, {s1}\ns_sub_u32 {s0}, {sC}, 10\ns_cmp_ge_u32 {sC}, 10\ns_cselect_b32 {sC}, {s0}, {sC}")
    if c.opt.get("rot1") == 0: a(f"s_mov_b32 {sC}, 0")
    if c.opt.get("rot1", 3) == 3: a(f"s_and_b32 {sC}, {sid}, 7")
    if c.opt.get("rot1") == 2: a(f"s_and_b32 {sC}, {sC}, 1\ns_mul_i32 {sC}, {sC}, 5")
    a(f"s_and_b32 {sWm}, {sW}, 1\ns_lshr_b32 {sWn}, {sW}, 1\ns_and_b32 {s1}, {sW}, 2")
    for i in range(192): assert (i*171) >> 11 == i//12
    for i in range(3):
        src = vL
        if i: a(f"v_add_u32 {vT0}, {64*i}, {vL}"); src = vT0
        a(f"v_mul_u32_u24 {vT1}, 171, {src}\nv_lshrrev_b32 {vT1}, 11, {vT1}")
        a(f"v_mul_u32_u24 {vT2}, 12, {vT1}\nv_sub_u32 {vT0}, {src}, {vT2}\nv_xor_b32 {vT0}, {s1}, {vT0}")
        a(f"v_mul_u32_u24 {vT1}, 192, {vT1}\nv_add_lshl_u32 {vW[i]}, {vT1}, {vT0}, 4")
    a(f"s_mul_i32 {sWb}, {sFB}, 192\ns_mul_i32 {s0}, {sWm}, {16*3072}\ns_add_u32 {sWb}, {sWb}, {s0}")
    RS_ = 3072
    if c.opt.get("fake410"):
        RS_ = 192
        for i in range(3): a(f"v_lshlrev_b32 {vW[i]}, 4, {vL}\nv_add_u32 {vW[i]}, {1024*i}, {vW[i]}")
        a(f"s_mul_i32 {sWb}, {sFB}, {640*192}\ns_mul_i32 {s0}, {sWm}, {16*192}\ns_add_u32 {sWb}, {sWb}, {s0}")
    a(f"s_mul_i32 {sMW}, {sW}, 3072")
    a(f"v_bfe_u32 {vT0}, {vL}, 3, 2\nv_lshrrev_b32 {vT1}, 5, {vL}\nv_lshl_add_u32 {vT0}, {vT1}, 5, {vT0}\nv_mul_u32_u24 {vT0}, {32*80}, {vT0}")
    a(f"v_lshrrev_b32 {vT1}, 4, {vL}\nv_xor_b32 {vT1}, {vT1}, {vL}\nv_and_b32 {vT1}, 7, {vT1}")
    a(f"v_add_lshl_u32 {vX[0]}, {vT0}, {vT1}, 4\nv_xor_b32 {vX[1]}, 64, {vX[0]}")
    a(f"s_lshr_b32 {s0}, {sRB}, 1\ns_lshl_b32 {s0}, {s0}, 3\ns_and_b32 {s1}, {sRB}, 1\ns_add_u32 {s0}, {s0}, {s1}\ns_lshl_b32 {s0}, {s0}, 2\ns_add_u32 {s0}, {s0}, {sW}")
    a(f"s_mul_i32 {sXb}, {s0}, {4*1280}")
    a(f"s_lshl_b32 {sMX}, {sW}, 12\ns_add_u32 {sMX}, {sMX}, {LX - 1024}")
    def chunk_offsets():
        a(f"s_lshl_b32 {sXo}, {sC}, 7\ns_add_u32 {sXo}, {sXo}, {sXb}\ns_mul_i32 {sWo}, {sC}, {64*RS_}\ns_add_u32 {sWo}, {sWo}, {sWb}")
    def next_chunk():
        a(f"s_add_u32 {sC}, {sC}, 1\ns_cmp_eq_u32 {sC}, 10\ns_cselect_b32 {sC}, 0, {sC}")
        chunk_offsets()
    def dmaX(i, slot):
        dma(a, f"s_add_u32 m0, {sMX}, {slot*16384 + i*1024 - i*1280 + 1024}", vX[i & 1], rX, sXo, imm=i*1280)
    def dmaW(i, slot, so):
        dma(a, f"s_add_u32 m0, {sMW}, {LW + slot*12288 + i*1024}", vW[i], rW, so)
    chunk_offsets()
    a(f"v_and_b32 {vT0}, 31, {vL}\nv_lshrrev_b32 {vT1}, 5, {vL}\nv_bfe_u32 {vT2}, {vL}, 1, 3\nv_xor_b32 {vT2}, {vT2}, {vT1}")
    a(f"s_lshl_b32 {s0}, {sWn}, 13\ns_add_u32 {s0}, {s0}, {LX}\nv_lshlrev_b32 {vT0}, 7, {vT0}\nv_add_u32 {vT0}, {s0}, {vT0}\nv_lshl_add_u32 {aX[0]}, {vT2}, 4, {vT0}")
    for kk in range(1, 4): a(f"v_xor_b32 {aX[kk]}, {32*kk}, {aX[0]}")
    a(f"v_bfe_u32 {vT0}, {vL}, 2, 2\nv_lshl_add_u32 {vT0}, {vT1}, 3, {vT0}\nv_mul_u32_u24 {vT0}, 192, {vT0}")
    a(f"v_and_b32 {vT2}, 3, {vL}\nv_lshl_add_u32 {vT0}, {vT2}, 3, {vT0}\nv_bfe_u32 {vT2}, {vL}, 4, 1")
    a(f"v_mul_u32_u24 {vT3}, 6144, {vT2}\nv_add_u32 {vT0}, {vT0}, {vT3}")
    a(f"s_mul_i32 {s0}, {sWm}, 3\ns_add_u32 {s1}, {s0}, 1")
    a(f"v_xor_b32 {vT3}, {s0}, {vT2}\nv_lshl_add_u32 {aW[0]}, {vT3}, 5, {vT0}\nv_xor_b32 {vT3}, {s1}, {vT2}\nv_lshl_add_u32 {aW[1]}, {vT3}, 5, {vT0}")
    kernarg_wait()
    mk_srd(a, rX, P_X, 2621440)
    a(f"s_cmp_lt_u32 {sW}, 2\ns_cselect_b64 {rW[0:2]}, s[{P_WG}:{P_WG+1}], s[{P_WU}:{P_WU+1}]")
    a(f"s_mov_b32 {rW[2]}, 1966080\ns_mov_b32 {rW[3]}, 0x00020000")
    for i in range(3): dmaW(i, 0, sWo)
    for i in range(4): dmaX(i, 0)
    for i in range(0, 96, 2): a(f"v_mov_b64 {acc[i:i+2]}, 0")
    for i in range(0, 20, 2): a(f"v_mov_b64 {R('v', 232+i, 2)}, 0")
    a(f"s_lshl_b32 {s0}, {c.sJQ}, 2\ns_bfe_u32 {s1}, {sid}, 0x20003\ns_add_u32 {sR}, {s0}, {s1}\ns_lshr_b32 {sCT}, {sid}, 5")
    sK = Sg(12, 1)
    a(f"s_mul_i32 {s0}, {sCT}, 3\ns_lshr_b32 {s0}, {s0}, 1\ns_lshl_b32 {sK[0]}, {s0}, 12")
    if c.opt.get("rot2") == 0: a(f"s_mov_b32 {sK[0]}, 0")
    if c.opt.get("rot2") == 2: a(f"s_bfe_u32 {s0}, {sid}, 0x20003\ns_mul_i32 {sK[0]}, {s0}, {3*4096}")
    if c.opt.get("rot2", 3) == 3: a(f"s_mul_i32 {s0}, {c.sJQ}, 3\ns_lshr_b32 {s0}, {s0}, 1\ns_lshl_b32 {sK[0]}, {s0}, 12")
    if c.opt.get("rot2") == 4: a(f"s_add_u32 {s0}, {c.sJQ}, {sCT}\ns_and_b32 {s0}, {s0}, 7\ns_mul_i32 {s0}, {s0}, 3\ns_lshr_b32 {s0}, {s0}, 1\ns_lshl_b32 {sK[0]}, {s0}, 12")
    for j in range(1, 12):
        a(f"s_add_u32 {sK[j]}, {sK[j-1]}, 4096\ns_cmp_eq_u32 {sK[j]}, {12*4096}\ns_cselect_b32 {sK[j]}, 0, {sK[j]}")
    a(f"s_mul_i32 {s1}, {sW}, {12*4096}\nv_lshl_add_u32 {vT0}, {vL}, 4, {s1}")
    a(f"s_mul_i32 {s0}, {sR}, {48*4096}\ns_add_u32 {s0}, {s0}, {WS_H}\nv_add_u32 {vHa}, {s0}, {vT0}")
    a(f"s_mul_i32 {s0}, {sCT}, {48*4096}\ns_add_u32 {s0}, {s0}, {WS_WDP}\nv_add_u32 {vDa}, {s0}, {vT0}")
    a(f"s_lshr_b32 {s0}, {sCT}, 2\ns_mul_i32 {s0}, {s0}, {48*4096}\ns_and_b32 {s1}, {sCT}, 3\ns_lshl_b32 {s1}, {s1}, 10\ns_add_u32 {s0}, {s0}, {s1}")
    a(f"s_add_u32 {s0}, {s0}, {WS_WDP + 8*48*4096}\nv_add_u32 {vEa}, {s0}, {vT0}")
    a(f"s_add_u32 {sWo1}, {sWo}, {32*RS_}")
    for i in range(3): dmaW(i, 1, sWo1)
    next_chunk()
    for i in range(3): dmaW(i, 2, sWo)

    def reads(buf, xslot, wslot, kk):
        out = []; ss = kk & 1
        def rw(T_):
            for n in range(2):
                out.append(f"ds_read_b64_tr_b16 {fW[buf][4*T_+2*n:4*T_+2*n+2]}, {aW[T_ & 1]} offset:{LW + wslot*12288 + ss*3072 + n*768 + (T_ >> 1)*64}")
        def rx(nt): out.append(f"ds_read_b128 {fX[buf][4*nt:4*nt+4]}, {aX[kk]} offset:{xslot*16384 + nt*4096}")
        rw(0); rx(0); rx(1); rw(1); rw(2)
        return out
    def mfmas(buf):
        return [f"v_mfma_f32_32x32x16_bf16 {acc[32*T_+16*nt:32*T_+16*nt+16]}, {fW[buf][4*T_:4*T_+4]}, {fX[buf][4*nt:4*nt+4]}, {acc[32*T_+16*nt:32*T_+16*nt+16]}"
                for T_ in range(3) for nt in ((1, 0) if (T_ == 1 and c.opt.get("snake")) else (0, 1))]
    def group(buf, rd, extra, first=2):
        mm = mfmas(buf)
        per = [rd[0:3], rd[3:6], rd[6:8], [], [], []]
        exs = [[] for _ in range(6)]
        for k, e in enumerate(extra):
            if isinstance(e, tuple): exs[e[0]].append(e[1])
            else: exs[min(5, first + (k*(6-first))//max(1, len(extra)))].append(e)
        for g in range(6):
            a(mm[g])
            for r in per[g]: a(r)
            for e in exs[g]: e()
    def half_stage(hs, ex, ex2, endwait):
        cc, h = (hs >> 1) & 1, hs & 1
        a("s_barrier")
        group(1, reads(0, cc, hs & 3, 2*h), ex)
        a("s_waitcnt lgkmcnt(0)")
        group(0, reads(1, cc, hs & 3, 2*h+1), ex2)
        endwait()
    EV = c.opt.get("even", [0, 2, 5, 7, 10])
    def std_ex(hs, last=False):
        cc, h = (hs >> 1) & 1, hs & 1
        if EV:
            if h == 0:
                l = [lambda i=i: dmaX(i, cc ^ 1) for i in range(4)] + [lambda: (a(f"s_add_u32 {sWo1}, {sWo}, {32*RS_}"), dmaW(0, (hs+3) & 3, sWo1))]
            else:
                l = [lambda: dmaW(1, (hs+2) & 3, sWo1), lambda: dmaW(2, (hs+2) & 3, sWo1)]
                if not last: l += [lambda: (next_chunk(), dmaW(0, (hs+3) & 3, sWo)), lambda: dmaW(1, (hs+3) & 3, sWo), lambda: dmaW(2, (hs+3) & 3, sWo)]
            return ([(g, e) for g, e in zip(EV, l) if g < 6], [(g-6, e) for g, e in zip(EV, l) if g >= 6])
        if h == 0:
            return ([lambda i=i: dmaX(i, cc ^ 1) for i in range(4)],
                    [lambda: a(f"s_add_u32 {sWo1}, {sWo}, {32*RS_}")] + [lambda i=i: dmaW(i, (hs+3) & 3, sWo1) for i in range(3)])
        return ([next_chunk] + [lambda i=i: dmaW(i, (hs+3) & 3, sWo) for i in range(3)], [])
    a(f"s_mov_b32 {sCnt}, 4")
    a("s_waitcnt vmcnt(6)")
    stamp(a, "first")
    UN = c.opt.get("unroll")
    Lp = a.label("g1loop")
    a(f"{Lp}:")
    for it in range(4 if UN else 1):
        for hs in range(4):
            def ew(hs=hs):
                if hs == 3 and not UN: a(f"s_sub_u32 {sCnt}, {sCnt}, 1\ns_cmp_lg_u32 {sCnt}, 0")
                a(f"s_waitcnt vmcnt({6 if hs & 1 else (8 if EV else 10)}) lgkmcnt(0)")
            half_stage(hs, *std_ex(hs), ew)
            if UN and hs & 1: stamp(a, f"c{2*it + hs//2}")
    if not UN: a(f"s_cbranch_scc1 {Lp}")
    ex, ex2 = std_ex(0)
    half_stage(0, ex, ex2 + [(5, lambda: sy.go_issue(1))], lambda: a(f"s_waitcnt vmcnt({10 if EV else 12}) lgkmcnt(0)"))
    stt, csp = WD[4][8:12], R("v", WD[4].base + 12, 8)
    cp = [csp[i] for i in range(3)]
    vS, vC = vX[0], vX[1]
    def addr1():
        a(f"v_and_b32 {vS}, 31, {vL}\nv_and_b32 {vT0}, 24, {vL}\nv_add_lshl_u32 {vS}, {vS}, {vT0}, 3")
        a(f"s_lshl_b32 {sXb}, {sRB}, 1\ns_add_u32 {sXb}, {sXb}, {sWn}\ns_lshl_b32 {sXo}, {sXb}, 10\ns_add_u32 {sXo}, {sXo}, {WS_ST}")
    def addr2():
        a(f"v_and_b32 {vT0}, 15, {vL}\nv_bfe_u32 {vT1}, {vL}, 4, 1\nv_mul_u32_u24 {vT3}, 1536, {vT1}\nv_lshrrev_b32 {vT2}, 5, {vL}")
    def addr3():
        a(f"v_mad_u32_u24 {vT3}, {vT2}, {sWo}, {vT3}\nv_add_lshl_u32 {vC}, {vT0}, {vT3}, 2")
        a(f"s_lshl_b32 {sWb}, {sFB}, 1\ns_add_u32 {sWb}, {sWb}, {sWm}\ns_mul_i32 {sC}, {sWb}, 3\ns_lshl_b32 {sWo}, {sC}, 6\ns_add_u32 {sWo}, {sWo}, {WS_CS}")
    vH = vW[1]
    def addr4():
        a(f"v_lshl_add_u32 {vT1}, {vT1}, 2, {vT2}\nv_lshl_add_u32 {vT1}, {vT1}, 4, {vT0}\nv_lshlrev_b32 {vH}, 4, {vT1}")
    half_stage(1, (std_ex(1, True)[0] if EV else []) + [(3, addr1), (4, addr2)], [lambda: a(f"s_movk_i32 {sWo}, 3072"), addr3, addr4], lambda: a(f"s_waitcnt vmcnt({2 if EV else 0}) lgkmcnt(0)"))
    stamp(a, "tail")
    sy.go_check(1)
    stamp(a, "go1")
    vm = VM(a)
    if EV: vm.note("w19"); vm.note("w19")
    def ld_stats():
        for nt in range(2): vm.issue(f"buffer_load_dwordx2 {stt[2*nt:2*nt+2]}, {vS}, {rWS}, {sXo} offen offset:{512*nt} sc1", "st")
    def ld_cs():
        for T_ in range(3): vm.issue(f"buffer_load_dword {cp[T_]}, {vC}, {rWS}, {sWo} offen offset:{64*T_} sc1", "st")
    def ld_wd(j, n, dst):
        va, off = (vDa, 1024*n) if n < 4 else (vEa, 0)
        vm.issue(f"buffer_load_dwordx4 {dst[4*n:4*n+4]}, {va}, {rWS}, {sK[j]} offen offset:{off} sc1", ("wd", j))
    def dma_wd(j, n):
        va, off = (vDa, 1024*n) if n < 4 else (vEa, 0)
        dma(a, f"s_add_u32 m0, {sMW}, {(j-5)*5120 + (0 if n < 4 else 4096)}", va, rWS, sK[j], imm=off, flag="sc1")
        vm.note(("wd", j))
    pre = [lambda j=j, n=n: ld_wd(j, n, WD[j]) for j in range(4) for n in range(5)]
    pre += [lambda j=j, n=n: dma_wd(j, n) for j in range(5, 9) for n in range(5)]
    NT = c.opt.get("wd_tail", 4)
    take = lambda k: [pre.pop(0) for _ in range(min(k, len(pre)))]
    half_stage(2, [ld_stats, ld_cs] + take(2), take(NT), lambda: (vm.wait("w19"), a("s_waitcnt lgkmcnt(0)")))
    half_stage(3, take(NT), take(NT), lambda: a("s_waitcnt lgkmcnt(0)"))
    a("s_barrier")
    a(f"s_mul_i32 {sMW}, {sW}, 20480")
    eA, eB = fW[0], fX[0]
    kk0, kk1, ve = aX, R("v", 8, 0), None
    vm.wait("st")
    prep = []
    kk0 = aX; kk1 = WD[4][12:16]; ve = WD[4][16:20]
    def prepA(T_):
        a(f"v_cvt_pk_bf16_f32 {eA[4*T_+1]}, {cp[T_]}, 0\nv_mov_b64 {eA[4*T_+2:4*T_+4]}, 0\nv_lshlrev_b32 {vT1}, 16, {eA[4*T_+1]}\nv_sub_f32 {vT2}, {cp[T_]}, {vT1}")
        cvtpk(a, eA[4*T_], vT1, vT2)
    def prepB(nt):
        m_ = stt[2*nt]
        a(f"v_cvt_pk_bf16_f32 {eB[4*nt]}, -{m_}, -{m_}\nv_mov_b64 {eB[4*nt+2:4*nt+4]}, 0\nv_lshlrev_b32 {vT0}, 16, {eB[4*nt]}\nv_add_f32 {vT0}, {vT0}, {m_}")
        a(f"v_cvt_pk_bf16_f32 {eB[4*nt+1]}, -{vT0}, 0")
    def prepK(nt, part):
        v_ = stt[2*nt+1]
        if part == 0:
            a(f"v_rsq_f32 {vT1}, {v_}\nv_mov_b32 {ve[2*nt]}, {v_}\nv_mov_b32 {ve[2*nt+1]}, {v_}\nv_mul_f32 {vT2}, {vT1}, {vT1}")
        else:
            a(f"v_mul_f32 {kk0[2*nt]}, {f32(K0)}, {vT1}\nv_mul_f32 {vT2}, {vT2}, {vT1}\nv_mul_f32 {kk1[2*nt]}, {f32(K1)}, {vT2}")
            a(f"v_mov_b32 {kk0[2*nt+1]}, {kk0[2*nt]}\nv_mov_b32 {kk1[2*nt+1]}, {kk1[2*nt]}")
    group(1, [], [lambda: prepA(0), lambda: prepB(0), lambda: prepB(1), lambda: prepA(1), lambda: prepA(2)], first=0)
    group(0, [], [lambda: prepK(0, 0), lambda: prepK(0, 1), lambda: prepK(1, 0), lambda: prepK(1, 1)], first=0)
    stamp(a, "loop")
    a(f"s_mul_i32 {s0}, {sXb}, {48*4096}\ns_add_u32 {s0}, {s0}, {WS_H}")
    tz = fW[1][0:8]
    NE = c.opt.get("wd_epi", [5, 5, 0, 0, 0, 0])
    SS = c.opt.get("st_start", 2)
    sHo = [sXo, sWo, sWo1]
    for T_ in range(3):
        a(f"s_add_u32 {s1}, {sC}, {T_}\ns_and_b32 {sHo[T_]}, {s1}, 1\ns_lshl_b32 {sHo[T_]}, {sHo[T_]}, 9\ns_lshr_b32 {s1}, {s1}, 1\ns_lshl_b32 {s1}, {s1}, 12")
        a(f"s_add_u32 {s1}, {s1}, {s0}\ns_add_u32 {sHo[T_]}, {sHo[T_]}, {s1}")
    held = []
    for T_ in range(3):
        for nt in range(2):
            g_ = acc[32*T_+16*nt:32*T_+16*nt+8]; u_ = acc[32*T_+16*nt+8:32*T_+16*nt+16]
            c0, c1, cv = kk0[2*nt:2*nt+2], kk1[2*nt:2*nt+2], ve[2*nt:2*nt+2]
            P = [slice(2*q, 2*q+2) for q in range(4)]
            mine = take(NE[2*T_+nt])
            def slot():
                if mine: mine.pop(0)()
            for p in P: a(f"v_pk_mul_f32 {tz[p]}, {g_[p]}, {g_[p]}")
            slot()
            for p in P: a(f"v_pk_fma_f32 {tz[p]}, {tz[p]}, {c1}, {c0}")
            for p in P: a(f"v_pk_mul_f32 {tz[p]}, {tz[p]}, {g_[p]}")
            slot()
            for q in range(8): a(f"v_exp_f32 {tz[q]}, {tz[q]}")
            slot()
            for p in P: a(f"v_pk_mul_f32 {g_[p]}, {g_[p]}, {u_[p]}")
            for p in P: a(f"v_pk_fma_f32 {tz[p]}, {tz[p]}, {cv}, {cv}")
            slot()
            for q in range(8): a(f"v_rcp_f32 {tz[q]}, {tz[q]}")
            while mine: slot()
            for p in P: a(f"v_pk_mul_f32 {g_[p]}, {g_[p]}, {tz[p]}")
            for q in range(4): cvtpk(a, u_[q], g_[2*q], g_[2*q+1])
            held.append(f"buffer_store_dwordx4 {u_[0:4]}, {vH}, {rWS}, {sHo[T_]} offen offset:{2048*nt} sc1")
            if 2*T_ + nt >= SS:
                for h_ in held: vm.issue(h_, "h")
                held = []
    stamp(a, "gelu")
    pre += [lambda n=n: ld_wd(4, n, WD[4]) for n in range(5)]
    for p in take(c.opt.get("wd_drain", 0)): p()
    a(f"s_lshl_b32 {s0}, {sXb}, 5\ns_add_u32 {s0}, {s0}, {sWb}")
    vm.wait("h")
    SC = c.opt.get("scnt", True)
    if SC: a(f"s_lshr_b32 {s0}, {s0}, 3"); sy.cnt_add(s0, sy.FL_HC)
    else: sy.put_flag(sy.FL_H, s0); vm.note()
    stamp(a, "hflag")
    for p in take(99): p()
    acc2 = R("v", 116, 80); HB = R("v", 196, 48)
    m2 = R("v", 244, 12)
    aLd, aWr, aRd, aRe, vXo, vXe, vSo, vSe = m2[0], m2[1:5], m2[5], m2[6], m2[7], m2[8], m2[9], m2[10]
    rO = rW
    mk_srd(a, rO, P_OUT, 2621440)
    a(f"v_lshl_add_u32 {aLd}, {vL}, 4, {sMW}")
    a(f"v_lshrrev_b32 {vT0}, 5, {vL}\nv_lshlrev_b32 {vT0}, 5, {vT0}\nv_xor_b32 {aWr[0]}, {vT0}, {aLd}")
    for n in range(1, 4): a(f"v_xor_b32 {aWr[n]}, {64*n}, {aWr[0]}")
    a(f"v_and_b32 {vT0}, 7, {vL}\nv_lshrrev_b32 {vT1}, 3, {vL}\nv_lshlrev_b32 {vT2}, 1, {vT0}\nv_xor_b32 {vT2}, {vT2}, {vT1}")
    a(f"s_mul_i32 {s0}, {sW}, 5120\nv_lshl_add_u32 {vT2}, {vT0}, 5, {vT2}\nv_lshl_add_u32 {aRd}, {vT2}, 4, {s0}")
    a(f"v_and_b32 {vT2}, 3, {vT1}\nv_lshrrev_b32 {vT3}, 2, {vT1}\nv_lshl_add_u32 {vT2}, {vT3}, 5, {vT2}\nv_mul_u32_u24 {vT2}, {32*80}, {vT2}\nv_add_lshl_u32 {vXo}, {vT2}, {vT0}, 4")
    a(f"v_lshl_add_u32 {vT2}, {vT1}, 6, {vT0}\nv_lshlrev_b32 {vSo}, 4, {vT2}")
    a(f"v_and_b32 {vT0}, 3, {vL}\nv_lshrrev_b32 {vT1}, 2, {vL}\nv_and_b32 {vT2}, 2, {vL}\nv_xor_b32 {vT2}, {vT2}, {vT1}")
    a(f"s_add_u32 {s0}, {s0}, 4096\nv_lshl_add_u32 {vT2}, {vT0}, 4, {vT2}\nv_lshl_add_u32 {aRe}, {vT2}, 4, {s0}")
    a(f"v_and_b32 {vT2}, 3, {vT1}\nv_bfe_u32 {vT3}, {vT1}, 2, 1\nv_lshl_add_u32 {vT2}, {vT3}, 5, {vT2}\nv_lshlrev_b32 {vT2}, 5, {vT2}\nv_lshrrev_b32 {vT3}, 3, {vT1}")
    a(f"v_add_u32 {vT2}, {vT2}, {vT3}\nv_mul_u32_u24 {vT2}, 160, {vT2}\nv_add_lshl_u32 {vXe}, {vT2}, {vT0}, 3\nv_lshlrev_b32 {vSe}, 3, {vL}")
    sXm, sXe, sSm, sSe, sF3 = sXo, sWo, sWo1, sXb, sWb
    a(f"s_lshr_b32 {s0}, {sR}, 2\ns_lshl_b32 {s0}, {s0}, 4\ns_and_b32 {s1}, {sR}, 3\ns_add_u32 {s0}, {s0}, {s1}\ns_lshl_b32 {s0}, {s0}, 2\ns_add_u32 {s0}, {s0}, {sW}")
    a(f"s_mul_i32 {s0}, {s0}, {2*1280}\ns_lshl_b32 {s1}, {sCT}, 7\ns_add_u32 {sXm}, {s0}, {s1}\ns_lshl_b32 {sXe}, {sCT}, 5\ns_add_u32 {sXe}, {sXe}, {s0}")
    a(f"s_lshl_b32 {sF3}, {sR}, 2\ns_add_u32 {sF3}, {sF3}, {sW}")
    a(f"s_lshl_b32 {sSm}, {sF3}, 14\ns_add_u32 {sSm}, {sSm}, {s1}\ns_add_u32 {sSm}, {sSm}, {WS_S}")
    a(f"s_lshl_b32 {sSe}, {sF3}, 9\ns_lshl_b32 {s1}, {sCT}, 16\ns_add_u32 {sSe}, {sSe}, {s1}\ns_add_u32 {sSe}, {sSe}, {WS_SX}")
    stamp(a, "pfq")
    if SC:
        a("s_waitcnt lgkmcnt(0)")
        sy.cnt_issue(sF3, sy.FL_HC); sy.cnt_check(8)
    else:
        a(f"s_lshl_b32 {s0}, {sF3}, 3\ns_lshl_b32 {sF3}, {sF3}, 1")
        sy.flags_issue(sy.FL_H, s0, 8); a("s_waitcnt vmcnt(0)"); vm.drained()
        stamp(a, "pfd")
        sy.flags_check(8)
    stamp(a, "hready")
    hslot = {}
    for j in range(9):
        for m in range(4): hslot[(j, m)] = HB[16*(j % 3) + 4*m: 16*(j % 3) + 4*m + 4]
    late = [(j, m) for m in range(4) for j in (9, 10, 11)]
    for k, jm in enumerate(late): hslot[jm] = HB[4*k:4*k+4]
    horder = [(j, m) for j in range(9) for m in range(4)] + late
    def ld_h():
        j, m = horder.pop(0)
        vm.issue(f"buffer_load_dwordx4 {hslot[(j, m)]}, {vHa}, {rWS}, {sK[j]} offen offset:{1024*m} sc1", ("h", j, m))
    for _ in range(12): ld_h()
    wset = {j: WD[j] for j in range(5)}; wset.update({5: WD[3], 6: WD[4], 7: WD[3], 8: WD[4], 9: WD[0], 10: WD[1], 11: WD[2]})
    gl = [(j, n) for j in (9, 10, 11) for n in range(5)]
    xs, ss = WD[3][0:10], WD[3][10:20]
    def mm(j, m, n):
        d = acc2[20*m+4*n:20*m+4*n+4]
        mfma16(a, d, wset[j][4*n:4*n+4], hslot[(j, m)], d if j else 0)
    for j in range(9):
        if j >= 5: a("s_waitcnt lgkmcnt(0)")
        for m in range(4):
            vm.wait(("h", j, m))
            if j == 0 and m == 0: stamp(a, "first2")
            for n in range(5):
                mm(j, m, n)
                if 4 <= j <= 7 and m == 0: a(f"ds_read_b128 {wset[j+1][4*n:4*n+4]}, {aLd} offset:{(j-4)*5120 + n*1024}")
                if n == 1 and m in (1, 3) and j >= 1 and gl and (gl[0][0] - 9) < j: ld_wd(*gl[0], wset[gl[0][0]]); gl.pop(0)
                if n == 1 and m == 2 and j == 4: ld_wd(*gl[0], wset[gl[0][0]]); gl.pop(0)
                if j == 7 and m == 0 and n == 2 and not SC: sy.flags_issue(sy.FL_3, sF3, 2); vm.note("f3")
                if j == 8 and m == 0 and n == 0 and SC: sy.cnt_issue(sF3, sy.FL_HC + 16384)
                if j == 8 and m == 0 and n == 2:
                    vm.issue(f"buffer_load_dwordx4 {xs[0:4]}, {vXo}, {rX}, {sXm} offen", "x")
                    vm.issue(f"buffer_load_dwordx4 {xs[4:8]}, {vXo}, {rX}, {sXm} offen offset:1280", "x")
                    vm.issue(f"buffer_load_dwordx2 {xs[8:10]}, {vXe}, {rX}, {sXe} offen offset:1024", "x")
            ld_h()
    assert not gl and not horder
    if SC: sy.cnt_check(2)
    else:
        vm.wait("f3"); sy.flags_check(2)
    stamp(a, "sready")
    a(f"s_add_u32 {s0}, {sSm}, 8192")
    vm.issue(f"buffer_load_dwordx4 {ss[0:4]}, {vSo}, {rWS}, {sSm} offen sc1", "x")
    vm.issue(f"buffer_load_dwordx4 {ss[4:8]}, {vSo}, {rWS}, {s0} offen sc1", "x")
    vm.issue(f"buffer_load_dwordx2 {ss[8:10]}, {vSe}, {rWS}, {sSe} offen sc1", "x")
    def wr(m, n): a(f"ds_write_b128 {aWr[n & 3]}, {acc2[20*m+4*n:20*m+4*n+4]} offset:{m*5120 + n*1024}")
    for m in range(4):
        k = 0
        for j in (9, 10, 11):
            vm.wait(("h", j, m), ("wd", j))
            for n in range(5):
                mm(j, m, n)
                if m and k >= 4 and k % 2 == 0 and (k-4)//2 < 5: wr(m-1, (k-4)//2)
                k += 1
    for n in range(5): wr(3, n)
    a(f"v_xor_b32 {vT0}, 128, {aRd}\ns_mov_b32 {s0}, 0xffff0000\ns_mov_b32 {s1}, {f32(-math.log2(math.e))}")
    a("s_waitcnt lgkmcnt(0)\ns_barrier")
    stamp(a, "loop2")
    Q = acc2; e = HB
    grp = [(aRd, 0, 2, 0), (vT0, 32, 2, 0), (aRe, 64, 1, 0)]
    def rd(gi):
        ad, b, nq, off = grp[gi]
        for src in range(4):
            for q in range(nq): a(f"ds_read_b128 {Q[b+4*nq*src+4*q:b+4*nq*src+4*q+4]}, {ad} offset:{src*20480 + off + q*256}")
    def fin(gi):
        ad, b, nq, off = grp[gi]; w_ = 4*nq
        y = Q[b:b+w_]
        for q in range(0, w_, 2):
            a(f"v_pk_add_f32 {y[q:q+2]}, {y[q:q+2]}, {Q[b+w_+q:b+w_+q+2]}\nv_pk_add_f32 {Q[b+2*w_+q:b+2*w_+q+2]}, {Q[b+2*w_+q:b+2*w_+q+2]}, {Q[b+3*w_+q:b+3*w_+q+2]}")
        for q in range(0, w_, 2): a(f"v_pk_add_f32 {y[q:q+2]}, {y[q:q+2]}, {Q[b+2*w_+q:b+2*w_+q+2]}")
        for q in range(w_): a(f"v_mul_f32 {e[q]}, {s1}, {y[q]}")
        for q in range(w_): a(f"v_exp_f32 {e[q]}, {e[q]}")
        if gi == 0: vm.wait("x")
        x_, s_ = xs[4*gi:4*gi+w_//2], ss[4*gi:4*gi+w_//2]
        sv, xv = e[8:16], e[16:24]
        for k in range(w_//2): a(f"v_lshlrev_b32 {sv[2*k]}, 16, {s_[k]}\nv_and_b32 {sv[2*k+1]}, {s0}, {s_[k]}")
        for q in range(0, w_, 2): a(f"v_pk_add_f32 {e[q:q+2]}, {e[q:q+2]}, 1.0 op_sel_hi:[1,0]")
        for q in range(w_): a(f"v_rcp_f32 {e[q]}, {e[q]}")
        for q in range(0, w_, 2): a(f"v_pk_mul_f32 {y[q:q+2]}, {y[q:q+2]}, {sv[q:q+2]}")
        for k in range(w_//2): a(f"v_lshlrev_b32 {xv[2*k]}, 16, {x_[k]}\nv_and_b32 {xv[2*k+1]}, {s0}, {x_[k]}")
        for q in range(0, w_, 2): a(f"v_pk_fma_f32 {y[q:q+2]}, {y[q:q+2]}, {e[q:q+2]}, {xv[q:q+2]}")
        for k in range(w_//2): cvtpk(a, x_[k], y[2*k], y[2*k+1])
        of = c.opt.get("out_flag", "")
        if gi < 2: a(f"buffer_store_dwordx4 {x_}, {vXo}, {rO}, {sXm} offen offset:{1280*gi} {of}")
        else: a(f"buffer_store_dwordx2 {x_}, {vXe}, {rO}, {sXe} offen offset:1024 {of}")
    rd(0); rd(2)
    a("s_waitcnt lgkmcnt(4)")
    rd(1)
    fin(0)
    a("s_waitcnt lgkmcnt(0)")
    fin(1); fin(2)
```

```python
import json, sys
from common import *
def spin(role, k, stat, nrec=1024):
    a = Asm()
    a(kernel_head("spin_kernel"))
    a("s_cmp_ge_u32 s2, 1\ns_cbranch_scc1 spin_end")
    a("s_load_dwordx2 s[4:5], s[0:1], 72\ns_waitcnt lgkmcnt(0)")
    a(f"s_mov_b32 s6, {WS_END}\ns_mov_b32 s7, 0x20000\nv_lshlrev_b32 v1, 6, v0")
    n = nrec // 64
    for i in range(16):
        a(f"s_mov_b32 s8, {WS_STAMP + i*4096}\nbuffer_load_dword v{8+i}, v1, s[4:7], s8 offen offset:8")
    for i in range(n):
        a(f"s_mov_b32 s8, {WS_STAMP + role*65536 + i*4096}\nbuffer_load_dword v{24+i}, v1, s[4:7], s8 offen offset:{8+4*k}")
    a("s_waitcnt vmcnt(0)\nv_readfirstlane_b32 s9, v8\ns_sub_u32 s9, s9, 100000")
    for i in range(16 + n): a(f"v_subrev_u32 v{8+i}, s9, v{8+i}")
    for i in range(1, 16): a(f"v_min_u32 v8, v8, v{8+i}")
    op = {"max": "max", "mean": "add", "min": "min"}[stat]
    for i in range(1, n): a(f"v_{op}_u32 v24, v24, v{24+i}")
    a("v_readlane_b32 s10, v8, 0\nv_readlane_b32 s11, v24, 0")
    for l in range(1, 64):
        a(f"v_readlane_b32 s12, v8, {l}\nv_readlane_b32 s13, v24, {l}\ns_min_u32 s10, s10, s12\ns_{op}_u32 s11, s11, s13")
    if stat == "mean":
        a(f"s_mul_hi_u32 s11, s11, {(1 << 32)//nrec}")
    a("s_add_u32 s11, s11, s9\ns_mov_b32 s14, 8000\nspin_loop:\ns_memrealtime s[12:13]\ns_waitcnt lgkmcnt(0)\ns_sub_u32 s12, s12, s11")
    a("s_sub_u32 s14, s14, 1\ns_cmp_eq_u32 s14, 0\ns_cbranch_scc1 spin_end\ns_cmp_lt_i32 s12, 10000\ns_cbranch_scc1 spin_loop\nspin_end:\ns_endpgm")
    return "\n".join(hazard.fix(a.lines)) + "\n"
def make(buildf, items, **opt):
    out = []
    for role, name, stat in items:
        fn = f"ro_{role}_{name}_{stat}.s"
        buildf(fn, stamps=True, as_list=True, real=True, **opt)
        info = json.load(open(fn + ".json"))
        k = info[role][2].index(name)
        nrec = 640 if (role == 1 and name in ("go1", "z", "fft2", "arr1", "arr2", "drain1", "drain2")) else 1024
        s = open(fn).read()
        s = s.replace('.amdgcn_target', "; @launch kernel=spin_kernel grid=(1,1,1) block=(64,1,1) lds=0\n.amdgcn_target")
        s = s.replace('.section .rodata,"a"\n', spin(role, k, stat, nrec) + '.section .rodata,"a"\n' + kd("spin_kernel", 48, 32) + "\n")
        open(fn, "w").write(s); out.append(fn[len("code/"):])
    print(json.dumps(out))
if __name__ == "__main__":
    import k3
    make(k3.build, [tuple(int(x) if x.isdigit() else x for x in it.split(":")) for it in sys.argv[1:]])
```

```python
from common import *

def dma(a, m0val, voff, srd_, soff, imm=0, flag=""):
    a(m0val)
    a(f"buffer_load_dwordx4 {voff}, {srd_}, {soff} offen" + (f" offset:{imm}" if imm else "") + (f" {flag}" if flag else "") + " lds")

def wave_sum(a, rs):
    for d in ("row_shr:1", "row_shr:2", "row_shr:4", "row_shr:8"):
        for r in rs: a(f"v_add_f32_dpp {r}, {r}, {r} {d} row_mask:0xf bank_mask:0xf bound_ctrl:1")
    for r in rs: a(f"v_add_f32_dpp {r}, {r}, {r} row_bcast:15 row_mask:0xa bank_mask:0xf")
    for r in rs: a(f"v_add_f32_dpp {r}, {r}, {r} row_bcast:31 row_mask:0xc bank_mask:0xf")

def trig_pairs(a, n, ang, step, T, Cd, Sd, extra=None):
    for q in range(n):
        a(f"v_cos_f32 {T[0]}, {ang}\nv_sin_f32 {T[2]}, {ang}\nv_add_f32 {ang}, {ang}, {step}")
        a(f"v_cos_f32 {T[1]}, {ang}\nv_sin_f32 {T[3]}, {ang}")
        if q < n-1: a(f"v_add_f32 {ang}, {ang}, {extra[q] if extra and extra.get(q) else step}")
        cvtpk(a, Cd[q], T[0], T[1]); cvtpk(a, Sd[q], T[2], T[3])

L_WT, L_ROW, L_ZS, L_WD, L_CS = 0, 12288, 22784, 45312, 0
L_STAT = 22528
WS_ZW = WS_Z + 0x1400000
ST = "sc1"

def aux1(a, c, kernarg_wait):
    V, Sg, sid, sW, vL, rWS = c.V, c.Sg, c.sid, c.sW, c.vL, c.rWS
    rX, rWR = Sg(4), Sg(4)
    s0, s1, s2_, s3_, sJ2, sSt = [Sg() for _ in range(6)]
    sJQ, sT = c.sJQ, c.sT
    T = V(4); vT0, vT1, vT2, vT3 = T[0], T[1], T[2], T[3]
    xab = V(12); xa, xb = xab[0:6], xab[6:12]
    v16, v4, vG, vI, fI, fG, ang, step = [V() for _ in range(8)]
    a(f"s_lshr_b32 {sJ2}, {sid}, 3\ns_lshl_b32 {sT}, {sJQ}, 5\ns_add_u32 {sT}, {sT}, {sJ2}")
    a(f"s_lshl_b32 {s2_}, {sJQ}, 2\ns_add_u32 {s2_}, {s2_}, {sW}\ns_lshl_b32 {s2_}, {s2_}, 5\ns_add_u32 {s2_}, {s2_}, {sJ2}")
    a(f"s_mul_i32 {s2_}, {s2_}, 1280\ns_add_u32 {s3_}, {s2_}, {1024*1280}")
    a(f"v_lshlrev_b32 {v16}, 4, {vL}\nv_lshlrev_b32 {v4}, 2, {vL}\nv_lshrrev_b32 {vG}, 4, {vL}\nv_and_b32 {vI}, 15, {vL}")
    a(f"v_cvt_f32_u32 {fI}, {vI}\nv_cvt_f32_u32 {fG}, {vG}")
    C20, S20 = V(4), V(4)
    a(f"v_mul_f32 {step}, {f32(-1/20)}, {fI}\nv_mul_f32 {ang}, {f32(8.0)}, {fG}\nv_mul_f32 {ang}, {ang}, {step}")
    trig_pairs(a, 4, ang, step, T, C20, S20)
    C0, S0, nS0, C1, S1, nC1 = [V(4) for _ in range(6)]
    a(f"v_mul_f32 {step}, {f32(1/32)}, {fI}\nv_mul_f32 {fG}, 4.0, {fG}\nv_mul_f32 {ang}, {fG}, {step}")
    trig_pairs(a, 2, ang, step, T, C0, S0)
    kernarg_wait()
    mk_srd(a, rX, P_X, 2621440)
    a(f"buffer_load_dwordx4 {xa[0:4]}, {v16}, {rX}, {s2_} offen")
    a(f"buffer_load_dwordx4 {xb[0:4]}, {v16}, {rX}, {s3_} offen")
    a(f"buffer_load_dword {xa[4]}, {v4}, {rX}, {s2_} offen offset:1024")
    a(f"buffer_load_dword {xb[4]}, {v4}, {rX}, {s3_} offen offset:1024")
    def wrows():
        a(f"s_cmp_lt_u32 {sW}, 2\ns_cselect_b64 {rWR[0:2]}, s[{P_WR}:{P_WR+1}], s[{P_WI}:{P_WI+1}]\ns_mov_b32 {rWR[2]}, 1314816\ns_mov_b32 {rWR[3]}, 0x00020000")
        a(f"s_and_b32 {s1}, {sW}, 1\ns_mul_i32 {s1}, {s1}, 3072\ns_mul_i32 {s0}, {sT}, 5136\ns_add_u32 {s0}, {s0}, {s1}\ns_sub_u32 {s0}, {s0}, 656")
        a(f"v_add_u32 {vT0}, {s0}, {v16}\nv_add_u32 {vT1}, 1314816, {vT0}\nv_min_u32 {vT1}, {vT0}, {vT1}\nv_add_u32 {vT0}, 1024, {vT0}\ns_mul_i32 {s1}, {sW}, 3072")
        dma(a, f"s_add_u32 m0, {s1}, {L_WT}", vT1, rWR, 0)
        dma(a, f"s_add_u32 m0, {s1}, {L_WT + 1024}", vT0, rWR, 0)
        a(f"buffer_load_dwordx4 {vT0}, {rWR}, 0 offen offset:1024 lds")
    if c.opt.get("touch"):
        sh = c.opt["touch"]
        L = a.label("tch")
        a(f"s_cmp_lg_u32 {sW}, 2\ns_cbranch_scc1 {L}\nv_lshlrev_b32 {vT0}, {sh}, {vL}")
        mk_srd(a, rWR, P_OUT, 2621440)
        a(f"buffer_load_dword {c.sync.vP}, {vT0}, {rWS}, 0 offen\nbuffer_load_dword {c.sync.vN}, {vT0}, {rWR}, 0 offen\n{L}:")
    WL = c.opt.get("wlate", 1)
    if WL == 0: wrows()
    set_exec(a, lanemask(lambda l: l >= 32))
    for r in (C20[2], C20[3], S20[2], S20[3]): a(f"v_mov_b32 {r}, 0")
    a("s_mov_b32 exec_hi, 0xffff0000")
    for r in (C20[0], C20[1], S20[0], S20[1]): a(f"v_mov_b32 {r}, 0")
    set_exec(a, FULL)
    a(f"v_and_b32 {vT0}, 1, {vI}\nv_mul_u32_u24 {vT0}, 0x8000, {vT0}\nv_lshl_or_b32 {vT0}, {vT0}, 16, {vT0}")
    for q in range(2):
        a(f"v_xor_b32 {C0[2+q]}, {C0[q]}, {vT0}\nv_xor_b32 {S0[2+q]}, {S0[q]}, {vT0}")
    a(f"s_mov_b32 {s0}, 0x80008000\ns_brev_b32 {s1}, 1\ns_mov_b32 {s2_}, 0x8000")
    for q in range(4):
        a(f"v_xor_b32 {nS0[q]}, {s0}, {S0[q]}\nv_xor_b32 {C1[q]}, {s1}, {C0[q]}\nv_xor_b32 {S1[q]}, {s1}, {S0[q]}\nv_xor_b32 {nC1[q]}, {s2_}, {C0[q]}")
    twr, twi = V(16), V(16)
    a(f"s_lshl_b32 {s0}, {sJQ}, 1\ns_and_b32 {s1}, {sW}, 1\ns_add_u32 {s0}, {s0}, {s1}\ns_lshl_b32 {s0}, {s0}, 6\ns_add_u32 {s0}, {s0}, {sJ2}")
    a(f"s_lshr_b32 {s1}, {sW}, 1\ns_mul_i32 {s0}, {s0}, {s1}\ns_mul_i32 {s1}, {s1}, {f32(-32/2048)}")
    a(f"v_cvt_f32_u32 {vT0}, {s0}\nv_mul_f32 {vT0}, {f32(-1/2048)}, {vT0}")
    a(f"v_mul_f32 {step}, {f32(-1/640)}, {fI}\nv_fma_f32 {ang}, {fG}, {step}, {vT0}\nv_mul_f32 {vT1}, {f32(13.0)}, {step}")
    for m in range(8):
        a(f"v_add_f32 {vT0}, {s1}, {ang}")
        a(f"v_cos_f32 {twr[m]}, {ang}\nv_sin_f32 {twi[m]}, {ang}\nv_cos_f32 {twr[8+m]}, {vT0}\nv_sin_f32 {twi[8+m]}, {vT0}")
        if m < 7: a(f"v_add_f32 {ang}, {ang}, {vT1 if m == 3 else step}")
    vR, vC8, aR0, aR1, aQ0, aQ1, vA0, vA1 = [V() for _ in range(8)]
    a(f"s_mul_i32 {s0}, {sW}, 1280\nv_add_u32 {aR0}, {s0}, {v16}\nv_add_u32 {aR1}, {s0}, {v4}")
    a(f"v_bfe_u32 {vR}, {vL}, 2, 2\nv_and_b32 {vC8}, 3, {vL}\nv_lshlrev_b32 {vC8}, 3, {vC8}")
    a(f"s_lshl_b32 {s0}, {s0}, 1\nv_lshl_add_u32 {vT2}, {vR}, 6, {vC8}\nv_add_u32 {vT2}, {s0}, {vT2}")
    a(f"v_lshlrev_b32 {vT0}, 1, {vG}\nv_add_u32 {vT1}, 1, {vT0}\nv_min_u32 {vT0}, 4, {vT0}\nv_min_u32 {vT1}, 4, {vT1}")
    a(f"v_lshl_add_u32 {aQ0}, {vT0}, 8, {vT2}\nv_lshl_add_u32 {aQ1}, {vT1}, 8, {vT2}")
    a(f"s_lshr_b32 {s0}, {sW}, 1\ns_mul_i32 {s0}, {s0}, 5120\ns_and_b32 {s1}, {sW}, 1\ns_lshl_b32 {s1}, {s1}, 2\ns_add_u32 {s0}, {s0}, {s1}")
    a(f"s_add_u32 {s1}, {s0}, {L_ZS + 259*16}\ns_add_u32 {s0}, {s0}, {L_ZS - 16}")
    a(f"v_mul_u32_u24 {vT0}, 80, {vG}\nv_add_lshl_u32 {vT0}, {vT0}, {vI}, 4\nv_add_u32 {vA0}, {s0}, {vT0}\nv_sub_u32 {vA1}, {s1}, {vT0}")
    aG = V(3); vU, aS, aO = R("v", 0), V(), V()
    a(f"v_lshlrev_b32 {aG[0]}, 1, v0\nv_add_u32 {aG[0]}, 658, {aG[0]}\nv_lshlrev_b32 {aS}, 4, v0")
    a(f"v_lshrrev_b32 {vT0}, 3, v0\nv_bfe_u32 {vT1}, v0, 2, 1\nv_mul_u32_u24 {vT1}, 1280, {vT1}\nv_lshl_add_u32 {vT0}, {vT0}, 3, {vT1}\nv_lshlrev_b32 {vT0}, 3, {vT0}\nv_lshl_add_u32 {aO}, {vC8}, 1, {vT0}")
    for i in range(320): assert (i*3277) >> 16 == i//20
    for it in (1, 2):
        a(f"v_add_u32 {vT0}, {(256*it - 320) & 0xffffffff}, {vU}")
        a(f"v_mul_u32_u24 {vT1}, 3277, {vT0}\nv_lshrrev_b32 {vT1}, 16, {vT1}\nv_mul_u32_u24 {vT1}, 20, {vT1}\nv_sub_u32 {vT1}, {vT0}, {vT1}\nv_subrev_u32 {vT1}, 10, {vT1}")
        a(f"v_cmp_gt_u32 vcc, 9, {vT1}\nv_lshl_add_u32 {vT2}, {vT0}, 1, 16\nv_add_u32 {vT3}, 1284, {vT2}\nv_cndmask_b32 {aG[it]}, {vT3}, {vT2}, vcc")
        if it == 1: a(f"v_add_u32 {vT3}, 512, {aG[0]}\nv_cmp_gt_u32 vcc, 64, {vU}\nv_cndmask_b32 {aG[1]}, {aG[1]}, {vT3}, vcc")
        else: a(f"v_cmp_eq_u32 vcc, 127, {vU}\nv_cndmask_b32 {aG[2]}, {aG[2]}, {vT2}, vcc")
    da, db = V(10), V(10)
    ma, mb = V(2, 2), V(2, 2)
    if WL == 1: wrows()
    stamp(a, "trig")
    a(f"s_waitcnt vmcnt({0 if WL == 2 else 3})")
    stamp(a, "x")
    if WL == 2: wrows()
    c.sync.publish(0)
    a(f"s_mov_b32 {s2_}, 0xffff0000")
    for x, d in ((xa, da), (xb, db)):
        for k in range(5):
            a(f"v_lshlrev_b32 {d[2*k]}, 16, {x[k]}\nv_and_b32 {d[2*k+1]}, {s2_}, {x[k]}")
    a(f"v_add_f32 {ma[0]}, {da[0]}, {da[1]}\nv_add_f32 {mb[0]}, {db[0]}, {db[1]}\nv_mul_f32 {ma[1]}, {da[0]}, {da[0]}\nv_mul_f32 {mb[1]}, {db[0]}, {db[0]}")
    for k in range(1, 10):
        a(f"v_fmac_f32 {ma[1]}, {da[k]}, {da[k]}\nv_fmac_f32 {mb[1]}, {db[k]}, {db[k]}")
        if k > 1: a(f"v_add_f32 {ma[0]}, {ma[0]}, {da[k]}\nv_add_f32 {mb[0]}, {mb[0]}, {db[k]}")
    wave_sum(a, (ma[1], mb[1], ma[0], mb[0]))
    a(f"s_mov_b32 {s0}, {f32(1/640)}")
    for m_ in (ma, mb): a(f"v_mul_f32 {m_[0]}, {s0}, {m_[0]}\nv_mul_f32 {m_[1]}, {s0}, {m_[1]}")
    for m_ in (ma, mb): a(f"v_fma_f32 {m_[1]}, -{m_[0]}, {m_[0]}, {m_[1]}")
    for m_ in (ma, mb): a(f"v_max_f32 {m_[1]}, 0, {m_[1]}\nv_add_f32 {m_[1]}, {f32(1e-5)}, {m_[1]}")
    a(f"v_rsq_f32 {vT0}, {ma[1]}\nv_rsq_f32 {vT1}, {mb[1]}")
    a(f"v_readlane_b32 {s2_}, {ma[0]}, 63\nv_readlane_b32 {s3_}, {mb[0]}, 63\nv_readlane_b32 {s0}, {vT0}, 63\nv_readlane_b32 {s1}, {vT1}, 63")
    a(f"v_mov_b32 {ang}, {s2_}\nv_mov_b32 {step}, {s3_}\nv_mul_f32 {ang}, {s0}, {ang}\nv_mul_f32 {step}, {s1}, {step}")
    for k in range(10): a(f"v_fma_f32 {da[k]}, {da[k]}, {s0}, -{ang}\nv_fma_f32 {db[k]}, {db[k]}, {s1}, -{step}")
    for k in range(5):
        a(f"v_add_f32 {vT0}, {da[2*k]}, {db[2*k]}\nv_add_f32 {vT1}, {da[2*k+1]}, {db[2*k+1]}")
        a(f"v_sub_f32 {vT2}, {da[2*k]}, {db[2*k]}\nv_sub_f32 {vT3}, {da[2*k+1]}, {db[2*k+1]}")
        cvtpk(a, xa[k], vT0, vT1); cvtpk(a, xb[k], vT2, vT3)
    a(f"ds_write_b128 {aR0}, {xa[0:4]} offset:{L_ROW}\nds_write_b128 {aR0}, {xb[0:4]} offset:{L_ROW+5120}")
    a(f"ds_write_b32 {aR1}, {xa[4]} offset:{L_ROW+1024}\nds_write_b32 {aR1}, {xb[4]} offset:{L_ROW+5120+1024}")
    a(f"s_lshl_b32 {s0}, {sW}, 3\nv_mov_b32 {vT0}, {s0}")
    set_exec(a, 1 << 63)
    a(f"ds_write_b64 {vT0}, {ma} offset:{L_STAT}\nds_write_b64 {vT0}, {mb} offset:{L_STAT+32}")
    set_exec(a, FULL)
    a("s_waitcnt vmcnt(0) lgkmcnt(0)\ns_barrier")
    stamp(a, "ln")
    if "fprio" in c.opt: a(f"s_setprio {c.opt['fprio']}")
    A1 = V(16)
    for row in range(2):
        for mt in range(2):
            f = A1[8*row+4*mt: 8*row+4*mt+4]
            a(f"ds_read_b64_tr_b16 {f[0:2]}, {aQ0} offset:{L_ROW + row*1280 + mt*32}")
            a(f"ds_read_b64_tr_b16 {f[2:4]}, {aQ1} offset:{L_ROW + row*1280 + mt*32}")
    Tr, Ti = V(16), V(16)
    for row in range(2):
        for mt in range(2):
            k = 8*row + 4*mt
            a(f"s_waitcnt lgkmcnt({6 - 4*row - 2*mt})")
            mfma16(a, Tr[k:k+4], A1[k:k+4], C20, 0)
            mfma16(a, Ti[k:k+4], A1[k:k+4], S20, 0)
    wre, wim = xab, V(12)
    def grd(it):
        for e in range(4): a(f"ds_read_u16 {wre[4*it+e]}, {aG[it]} offset:{L_WT + e*1284}\nds_read_u16 {wim[4*it+e]}, {aG[it]} offset:{L_WT + 6144 + e*1284}")
    def gwr(it):
        for e in range(4): a(f"v_lshl_or_b32 {wim[4*it+e]}, {wim[4*it+e]}, 16, {wre[4*it+e]}")
        a(f"ds_write_b128 {aS}, {wim[4*it:4*it+4]} offset:{L_ZS + 10240 + it*4096}")
    grd(0)
    stamp(a, "s1")
    c.sync.publish(1)
    Br, Bi = da[0:8], db[0:8]
    Xr, Xi = A1, V(16)
    pend = []
    for row in range(2):
        for m in range(0, 8, 2):
            k = 8*row + m
            cmul(a, Tr[k], Ti[k], twr[k], twi[k], vT0, vT2)
            if pend: pend.pop(0)()
            cmul(a, Tr[k+1], Ti[k+1], twr[k+1], twi[k+1], vT1, vT3)
            if pend: pend.pop(0)()
            cvtpk(a, Br[4*row + m//2], vT0, vT1); cvtpk(a, Bi[4*row + m//2], vT2, vT3)
            if (row, m) in ((0, 4), (1, 2)): a("s_waitcnt lgkmcnt(0)"); grd(1 + row)
        br, bi = Br[4*row:4*row+4], Bi[4*row:4*row+4]
        k = 8*row
        for d, A_, B_, C_ in ((Xr[k:k+4], C0, br, 0), (Xi[k:k+4], C0, bi, 0), (Xr[k:k+4], S0, bi, 1), (Xi[k:k+4], nS0, br, 1),
                              (Xr[k+4:k+8], C1, br, 0), (Xi[k+4:k+8], nC1, bi, 0), (Xr[k+4:k+8], S1, bi, 1), (Xi[k+4:k+8], S1, br, 1)):
            pend.append(lambda d=d, A_=A_, B_=B_, C_=C_: mfma16(a, d, A_, B_, d if C_ else 0))
    for i, p in enumerate(pend):
        p()
        if i in (1, 4): gwr(i // 4)
    a("s_waitcnt lgkmcnt(2)")
    gwr(2)
    stamp(a, "gath")
    for mt in range(2):
        if mt == 1:
            set_exec(a, 1)
            for r in (Xr[4], Xi[4], Xr[12], Xi[12]): a(f"v_mul_f32 {r}, 0.5, {r}")
        for r in range(4):
            if mt == 0: ok = lambda l: (l & 15) <= 10 and not (r == 0 and l == 0)
            else:       ok = lambda l: 1 <= (l & 15) <= 9 or (r == 0 and l == 0)
            if r == 0: set_exec(a, lanemask(ok))
            if r == 1: a(f"s_mov_b32 exec_lo, 0x{lanemask(ok) & 0xffffffff:x}")
            k = 4*mt + r
            t0, t1 = (vT0, vT1) if r & 1 else (vT2, vT3)
            cvtpk(a, t0, Xr[k], Xr[8+k]); cvtpk(a, t1, Xi[k], Xi[8+k])
            o = (r if mt == 0 else 3 - r) * 80
            a(f"ds_write2_b32 {vA0 if mt == 0 else vA1}, {t0}, {t1} offset0:{o} offset1:{o+2}")
    set_exec(a, FULL)
    vt16 = aS
    a(f"s_mul_i32 {s0}, {sT}, 20480\ns_add_u32 {s0}, {s0}, {WS_ZW}")
    a("s_waitcnt lgkmcnt(0)\ns_barrier")
    stamp(a, "fft")
    zz = [twr[0:4], twr[4:8], twr[8:12], twr[12:16], twi[0:4]]
    for i in range(5): a(f"ds_read_b128 {zz[i]}, {aO} offset:{L_ZS + 2048*i}")
    for i in range(5):
        a(f"s_waitcnt lgkmcnt({4-i})")
        a(f"buffer_store_dwordx4 {zz[i]}, {vt16}, {rWS}, {s0} offen {ST}")
        if i < 4: a(f"s_add_u32 {s0}, {s0}, 4096")
    L = a.label("stat")
    a(f"s_cmp_lg_u32 {sW}, 3\ns_cbranch_scc1 {L}\nds_read_b128 {T}, {v16} offset:{L_STAT}")
    a(f"s_lshl_b32 {sSt}, {sT}, 7\ns_add_u32 {sSt}, {sSt}, {WS_ST}\ns_mov_b64 exec, 0xff\ns_waitcnt lgkmcnt(0)")
    a(f"buffer_store_dwordx4 {T}, {v16}, {rWS}, {sSt} offen {ST}\ns_mov_b64 exec, -1\n{L}:")
    stamp(a, "st")


class Prep:
    def __init__(self, a, c):
        self.a, self.c = a, c
        self.rD, self.rC = c.Sg(4), c.Sg(4)
        self.sP, self.sCo, self.s0, self.s1 = c.Sg(), c.Sg(), c.Sg(), c.Sg()
        self.cs = R("v", 216, 40); self.t = R("v", 212, 4)
    def issue(self):
        a, c = self.a, self.c; sW, vL = c.sW, c.vL; s0, s1, sP, sCo = self.s0, self.s1, self.sP, self.sCo
        t0, t1, t2 = self.t[0], self.t[1], self.t[2]
        a(f"s_sub_u32 {sP}, {c.sid}, 160")
        mk_srd(a, self.rD, P_WD, 1966080)
        a(f"s_lshr_b32 {s0}, {sP}, 1\ns_lshl_b32 {s0}, {s0}, 2\ns_add_u32 {s0}, {s0}, {sW}\ns_lshl_b32 {s0}, {s0}, 4\ns_and_b32 {s1}, {sP}, 1\ns_add_u32 {s0}, {s0}, {s1}\ns_mul_i32 {s0}, {s0}, 640")
        a(f"s_mul_i32 {s1}, {sW}, 5120")
        for i in range(320): assert (i*1639) >> 16 == i//40
        for i in range(5):
            a(f"v_add_u32 {t0}, {64*i}, {vL}\nv_mul_u32_u24 {t1}, 1639, {t0}\nv_lshrrev_b32 {t1}, 16, {t1}\nv_mul_u32_u24 {t1}, 40, {t1}\nv_add_lshl_u32 {t0}, {t0}, {t1}, 4")
            dma(a, f"s_add_u32 m0, {s1}, {L_WD + i*1024}", t0, self.rD, s0)
    def issue2(self):
        a, c = self.a, self.c; sW, vL = c.sW, c.vL; s0, s1, sP, sCo = self.s0, self.s1, self.sP, self.sCo
        t0, t1, t2 = self.t[0], self.t[1], self.t[2]
        a(f"s_lshr_b32 {s0}, {sP}, 3\ns_cmp_lt_u32 {s0}, 6\ns_cselect_b64 {self.rC[0:2]}, s[{P_WG}:{P_WG+1}], s[{P_WU}:{P_WU+1}]\ns_cselect_b32 {s1}, 0, 6\ns_cselect_b32 {sCo}, 0, 6144")
        a(f"s_mov_b32 {self.rC[2]}, 1966080\ns_mov_b32 {self.rC[3]}, 0x00020000")
        a(f"s_sub_u32 {s0}, {s0}, {s1}\ns_and_b32 {s1}, {sP}, 6\ns_mul_i32 {s1}, {s1}, 3\ns_add_u32 {s0}, {s0}, {s1}\ns_lshl_b32 {s0}, {s0}, 7")
        a(f"s_add_u32 {sCo}, {sCo}, {s0}\ns_add_u32 {sCo}, {sCo}, {s0}\ns_and_b32 {s1}, {sP}, 1\ns_mul_i32 {s1}, {s1}, 12288\ns_add_u32 {sCo}, {sCo}, {s1}")
        a(f"s_mul_i32 {s1}, {s1}, 80\ns_add_u32 {s0}, {s0}, {s1}\ns_mul_i32 {s1}, {sW}, {8*3072}\ns_add_u32 {s0}, {s0}, {s1}")
        a(f"v_lshrrev_b32 {t0}, 3, {vL}\nv_mul_u32_u24 {t0}, 192, {t0}\nv_and_b32 {t1}, 7, {vL}\nv_add_lshl_u32 {t0}, {t0}, {t1}, 4")
        for i in range(10):
            a(f"buffer_load_dwordx4 {self.cs[4*i:4*i+4]}, {t0}, {self.rC}, {s0} offen")
            if i < 9: a(f"s_add_u32 {s0}, {s0}, {32*3072}")
    def run(self):
        a, c = self.a, self.c; V, sW, vL, rWS = c.V, c.sW, c.vL, c.rWS; s0, s1, sP, sCo = self.s0, self.s1, self.sP, self.sCo
        t0, t1, t2, t3 = [self.t[i] for i in range(4)]
        wd = V(20); sel = V(4); d = V(4); v16 = V(); s2_ = c.Sg()
        a(f"v_lshrrev_b32 {t0}, 5, {vL}\nv_bfe_u32 {t1}, {vL}, 2, 3\nv_lshl_add_u32 {t0}, {t0}, 4, {t1}\nv_mul_u32_u24 {t0}, 640, {t0}")
        a(f"v_and_b32 {t1}, 3, {vL}\nv_lshl_add_u32 {t0}, {t1}, 3, {t0}\ns_mul_i32 {s0}, {sW}, 160\nv_add_u32 {t0}, {s0}, {t0}")
        for f in range(5):
            for n in range(2): a(f"ds_read_b64_tr_b16 {wd[4*f+2*n:4*f+2*n+2]}, {t0} offset:{L_WD + f*32 + n*5120}")
        a(f"v_and_b32 {t1}, 15, {vL}\nv_and_b32 {t2}, 1, {vL}\nv_lshlrev_b32 {t2}, 4, {t2}\nv_mov_b32 {t3}, 0x3f80\nv_lshlrev_b32 {t2}, {t2}, {t3}\nv_lshrrev_b32 {t1}, 1, {t1}")
        for q in range(4): a(f"v_cmp_eq_u32 vcc, {q}, {t1}\nv_cndmask_b32 {sel[q]}, 0, {t2}, vcc")
        a(f"v_lshlrev_b32 {v16}, 4, {vL}")
        a(f"s_and_b32 {s0}, {sP}, 1\ns_lshl_b32 {s0}, {s0}, 2\ns_add_u32 {s0}, {s0}, {sW}\ns_mul_i32 {s0}, {s0}, 5\ns_lshr_b32 {sP}, {sP}, 1\ns_lshl_b32 {sP}, {sP}, 12\ns_add_u32 {sP}, {sP}, {WS_WDP}")
        for f in range(5):
            a(f"s_lshr_b32 {s1}, {s0}, 2\ns_mul_i32 {s1}, {s1}, {48*4 - 4}\ns_add_u32 {s1}, {s1}, {s0}\ns_lshl_b32 {s1}, {s1}, 10\ns_add_u32 {s1}, {s1}, {sP}")
            a(f"s_waitcnt lgkmcnt({8-2*f})")
            a(f"buffer_store_dwordx4 {wd[4*f:4*f+4]}, {v16}, {rWS}, {s1} offen {ST}")
            if f < 4: a(f"s_add_u32 {s0}, {s0}, 1")
        a("s_waitcnt vmcnt(5)")
        for i in range(10): mfma16(a, d, sel, self.cs[4*i:4*i+4], d if i else 0)
        a(f"v_and_b32 {t1}, 15, {vL}\nv_lshrrev_b32 {t2}, 4, {vL}\nv_lshl_add_u32 {t1}, {t1}, 1, {t2}\ns_lshl_b32 {s0}, {sW}, 9\nv_lshl_add_u32 {t1}, {t1}, 4, {s0}")
        a(f"s_mov_b32 exec_hi, 0\nds_write_b128 {t1}, {d} offset:{L_CS}\ns_mov_b32 exec_hi, -1\nv_lshlrev_b32 {t0}, 2, {vL}")
        a("s_waitcnt lgkmcnt(0)\ns_barrier")
        L = a.label("cs")
        a(f"s_cmp_lg_u32 {sW}, 3\ns_cbranch_scc1 {L}")
        q8 = self.cs[0:8]
        for k in range(4): a(f"ds_read2st64_b32 {q8[2*k:2*k+2]}, {t0} offset0:{L_CS//256 + 2*k} offset1:{L_CS//256 + 2*k + 1}")
        a(f"s_add_u32 {sCo}, {sCo}, {WS_CS}\ns_waitcnt lgkmcnt(0)")
        for k in range(1, 8): a(f"v_add_f32 {q8[0]}, {q8[0]}, {q8[k]}")
        a(f"buffer_store_dword {q8[0]}, {t0}, {rWS}, {sCo} offen {ST}\n{L}:")


def colfft(a, c, wait_ready):
    V, Sg, sid, sW, vL, rWS = c.V, c.Sg, c.sid, c.sW, c.vL, c.rWS
    s0, s1 = Sg(), Sg()
    T = V(4); vT0, vT1, vT2, vT3 = T[0], T[1], T[2], T[3]
    C, S_, nS = V(8), V(8), V(8)
    twr, twi = V(16), V(16)
    fL, fH, ang, step, s4 = [V() for _ in range(5)]
    a(f"v_and_b32 {vT0}, 31, {vL}\nv_cvt_f32_u32 {fL}, {vT0}\nv_lshrrev_b32 {vT1}, 5, {vL}\nv_cvt_f32_u32 {fH}, {vT1}\nv_mul_f32 {fH}, 4.0, {fH}")
    a(f"v_mul_f32 {step}, {f32(1/32)}, {fL}\nv_mul_f32 {ang}, {fH}, {step}\nv_mul_f32 {s4}, {f32(5.0)}, {step}")
    trig_pairs(a, 4, ang, step, T, C, S_, {1: s4})
    a(f"v_and_b32 {vT0}, 1, {vL}\nv_mul_u32_u24 {vT0}, 0x8000, {vT0}\nv_lshl_or_b32 {vT0}, {vT0}, 16, {vT0}\ns_mov_b32 {s0}, 0x80008000")
    for q in range(4): a(f"v_xor_b32 {C[4+q]}, {C[q]}, {vT0}\nv_xor_b32 {S_[4+q]}, {S_[q]}, {vT0}")
    for q in range(8): a(f"v_xor_b32 {nS[q]}, {s0}, {S_[q]}")
    a(f"v_mul_f32 {step}, {f32(-1/1024)}, {fL}\nv_mul_f32 {ang}, {fH}, {step}\nv_mul_f32 {s4}, {f32(5.0)}, {step}")
    for r in range(16):
        a(f"v_cos_f32 {twr[r]}, {ang}\nv_sin_f32 {twi[r]}, {ang}")
        if r < 15: a(f"v_add_f32 {ang}, {ang}, {s4 if r & 3 == 3 else step}")
    vZ, vA, vA8, vAw, vRd, vt16, vAo = fL, fH, ang, step, s4, V(), V()
    a(f"v_lshrrev_b32 {vT0}, 3, {vL}\nv_xor_b32 {vT1}, {vT0}, {vL}\nv_and_b32 {vT2}, 7, {vT1}\nv_mul_u32_u24 {vT0}, 1280, {vT0}\nv_add_lshl_u32 {vZ}, {vT0}, {vT2}, 4")
    a(f"v_and_b32 {vT1}, 3, {vT1}\nv_and_b32 {vT0}, -4, v0\nv_add_lshl_u32 {vRd}, {vT0}, {vT1}, 4\nv_lshlrev_b32 {vt16}, 4, v0")
    a(f"v_xor_b32 {vT0}, {sW}, {vL}\nv_and_b32 {vT0}, 7, {vT0}\nv_lshl_add_u32 {vT0}, {vL}, 3, {vT0}\nv_lshlrev_b32 {vA}, 4, {vT0}\nv_add_u32 {vA8}, 8, {vA}")
    a(f"v_lshrrev_b32 {vT0}, 1, {vL}\nv_xor_b32 {vT0}, {sW}, {vT0}\nv_and_b32 {vT0}, 3, {vT0}\nv_lshl_add_u32 {vT0}, {vL}, 2, {vT0}\nv_lshlrev_b32 {vAo}, 4, {vT0}")
    a(f"s_add_u32 {s0}, {sW}, 4\nv_bfe_u32 {vT0}, {vL}, 2, 3\nv_xor_b32 {vT1}, {s0}, {vT0}\nv_lshl_add_u32 {vT0}, {vT0}, 3, {vT1}\nv_and_b32 {vT1}, 32, {vL}")
    a(f"v_lshl_add_u32 {vT0}, {vT1}, 3, {vT0}\nv_and_b32 {vT1}, 3, {vL}\nv_lshl_add_u32 {vT0}, {vT0}, 2, {vT1}\nv_lshlrev_b32 {vAw}, 2, {vT0}")
    a(f"s_mul_i32 {s0}, {sW}, {64*20480}\ns_lshl_b32 {s1}, {sid}, 7\ns_add_u32 {s0}, {s0}, {s1}\ns_add_u32 {s0}, {s0}, {WS_ZW}\ns_lshl_b32 {s1}, {sW}, 13")
    wait_ready()
    for i in range(8):
        dma(a, f"s_add_u32 m0, {s1}, {i*1024}", vZ, rWS, s0, flag="sc1")
        if i < 7: a(f"s_add_u32 {s0}, {s0}, {8*20480}")
    W = V(16, 4)
    Pr, Pi = V(8), V(8)
    D = [(V(16), V(16)), (V(16), V(16))]
    wr = V(16)
    a(f"s_lshl_b32 {s0}, {sid}, 14\ns_add_u32 {s0}, {s0}, {WS_Y}\ns_mov_b32 {s1}, 0xffff0000")
    a("s_waitcnt vmcnt(0)\ns_barrier")
    stamp(a, "z")
    if "cprio" in c.opt: a(f"s_setprio {c.opt['cprio']}")
    for s in range(2):
        a(f"ds_read2st64_b64 {Pr[4*s:4*s+4]}, {vA} offset0:{32*s} offset1:{32*s+16}")
        a(f"ds_read2st64_b64 {Pi[4*s:4*s+4]}, {vA8} offset0:{32*s} offset1:{32*s+16}")
    for r in range(0, 16, 2):
        o = (8*(r >> 2) + (r & 3))*4
        a(f"ds_read2st64_b32 {W[r:r+2]}, {vAw} offset0:{o} offset1:{o+4}")
    def half(k, s):
        Dr, Di = D[k & 1]; dataA = (k & 1) == 0
        Sp, Sm = (nS, S_) if k >= 2 else (S_, nS)
        sl = slice(4*s, 4*s+4); out = []
        for d, dat, mat, first in ((Dr, Pr, C, s == 0), (Di, Pi, C, s == 0), (Dr, Pi, Sp, False), (Di, Pr, Sm, False)):
            A_, B_ = (dat[sl], mat[sl]) if dataA else (mat[sl], dat[sl])
            out.append(lambda d=d, A_=A_, B_=B_, first=first: mfma32(a, d, A_, B_, 0 if first else d))
        return out
    a("s_waitcnt lgkmcnt(10)")
    for m in half(0, 0): m()
    a("s_waitcnt lgkmcnt(8)")
    for i, m in enumerate(half(0, 1)): m()
    a("s_waitcnt lgkmcnt(0)")
    for r in range(6): a(f"v_lshlrev_b32 {wr[r]}, 16, {W[r]}\nv_and_b32 {W[r]}, {s1}, {W[r]}")
    for k in range(3):
        Dr, Di = D[k & 1]
        fr, fi = (wr, W) if k == 1 else (twr, twi)
        pend = []
        for r in range(0, 16, 2):
            if r == 8: pend = half(k+1, 0)
            cmul(a, Dr[r], Di[r], fr[r], fi[r], vT0, vT2, k == 2)
            if pend: pend.pop(0)()
            cmul(a, Dr[r+1], Di[r+1], fr[r+1], fi[r+1], vT1, vT3, k == 2)
            cvtpk(a, Pr[r//2], vT0, vT1); cvtpk(a, Pi[r//2], vT2, vT3)
        for i, m in enumerate(half(k+1, 1)):
            m()
            if k == 0 and i >= 2:
                for r in range(6 + 5*(i-2), 11 + 5*(i-2)): a(f"v_lshlrev_b32 {wr[r]}, 16, {W[r]}\nv_and_b32 {W[r]}, {s1}, {W[r]}")
    stamp(a, "fft2")
    Dr, Di = D[1]
    for R4 in range(4):
        o = W[4*R4:4*R4+4]
        cvtpk(a, o[0], Dr[4*R4], Dr[4*R4+1]); cvtpk(a, o[1], Dr[4*R4+2], Dr[4*R4+3])
        cvtpk(a, o[2], Di[4*R4], Di[4*R4+1]); cvtpk(a, o[3], Di[4*R4+2], Di[4*R4+3])
        a(f"ds_write_b128 {vAo}, {o} offset:{32768 + R4*4096}")
    a("s_waitcnt lgkmcnt(0)\ns_barrier")
    for i in range(4): a(f"ds_read_b128 {W[4*i:4*i+4]}, {vRd} offset:{32768 + i*4096}")
    for i in range(4):
        a(f"s_waitcnt lgkmcnt({3-i})")
        a(f"buffer_store_dwordx4 {W[4*i:4*i+4]}, {vt16}, {rWS}, {s0} offen {ST}")
        if i < 3: a(f"s_add_u32 {s0}, {s0}, 4096")


WS_SX = WS_S + 2048*1024
def rowinv(a, c, wait_ready, LB=256):
    V, Sg, sid, sW, vL, rWS = c.V, c.Sg, c.sid, c.sW, c.vL, c.rWS
    s0, s1, s2_, s3_, sH, sP = [Sg() for _ in range(6)]
    sT = c.sT
    T = V(4); vT0, vT1, vT2, vT3 = T[0], T[1], T[2], T[3]
    L_Y, L_ZERO, L_O = LB, LB + 10240, LB + 10496
    RS = 20*144
    a(f"s_and_b32 {sH}, {sW}, 1\ns_lshr_b32 {sP}, {sW}, 1")
    vG, vI, fG, fI, fD = [V() for _ in range(5)]
    a(f"v_lshrrev_b32 {vG}, 4, {vL}\nv_and_b32 {vI}, 15, {vL}\nv_cvt_f32_u32 {fG}, {vG}\nv_cvt_f32_u32 {fI}, {vI}")
    a(f"s_lshl_b32 {s0}, {sH}, 4\nv_add_u32 {vT0}, {s0}, {vI}\nv_cvt_f32_u32 {fD}, {vT0}")
    A2 = V(16); O = V(32, 4)
    for q in range(4): a(f"v_mov_b32 {O[q]}, 0\nv_mov_b32 {A2[4*q+3]}, 0")
    a(f"ds_write_b128 {O[0]}, {O[0:4]} offset:{L_ZERO}")
    C, S_, mS, sC = V(4), V(4), V(4), V(4)
    ang, step = V(), V()
    a(f"v_mul_f32 {step}, {f32(1/32)}, {fD}\nv_mul_f32 {ang}, {f32(8.0)}, {fG}\nv_mul_f32 {ang}, {ang}, {step}")
    trig_pairs(a, 4, ang, step, T, C, S_)
    a(f"v_lshrrev_b32 {vT0}, 5, {vL}\nv_mul_u32_u24 {vT0}, 0x8000, {vT0}\nv_lshl_or_b32 {vT0}, {vT0}, 16, {vT0}\nv_xor_b32 {vT1}, 0x80008000, {vT0}")
    for q in range(4): a(f"v_xor_b32 {sC[q]}, {C[q]}, {vT0}\nv_xor_b32 {mS[q]}, {S_[q]}, {vT1}")
    M = V(8)
    a(f"s_mov_b32 {s0}, {f32(2.0/(640*2048))}")
    for nt in range(2):
        if nt == 0: a(f"v_mul_f32 {step}, {f32(-1/20)}, {fI}")
        else: a(f"v_add_f32 {step}, {f32(-16/20)}, {step}")
        a(f"v_mul_f32 {ang}, {fG}, {step}")
        for t in range(3):
            a(f"v_cos_f32 {vT0}, {ang}\nv_sin_f32 {vT1}, {ang}")
            if t < 2: a(f"v_fmac_f32 {ang}, 4.0, {step}")
            a(f"v_mul_f32 {vT0}, {s0}, {vT0}\nv_mul_f32 {vT1}, {s0}, {vT1}")
            cvtpk(a, M[4*nt+t], vT0, vT1)
        a(f"v_mov_b32 {M[4*nt+3]}, 0")
    twr, twi = V(12), V(12)
    a(f"s_lshr_b32 {s0}, {sT}, 5\ns_mul_i32 {s0}, {s0}, 96\ns_add_u32 {s0}, {s0}, {sT}\ns_mul_i32 {s0}, {s0}, {sP}\ns_mul_i32 {s1}, {sP}, {f32(32/2048)}")
    a(f"v_cvt_f32_u32 {vT0}, {s0}\nv_mul_f32 {vT0}, {f32(1/2048)}, {vT0}")
    a(f"v_mul_f32 {step}, {f32(1/640)}, {fD}\nv_fma_f32 {ang}, {fG}, {step}, {vT0}")
    for t in range(3):
        for r in range(4):
            src = ang if r == 0 else vT0
            a(f"v_cos_f32 {twr[4*t+r]}, {src}\nv_sin_f32 {twi[4*t+r]}, {src}")
            if r < 3: a(f"v_add_f32 {vT0}, {s1}, {src}")
        if t < 2: a(f"v_fmac_f32 {ang}, 4.0, {step}")
    adr = V(6)
    a(f"v_bfe_u32 {vT0}, {vL}, 2, 2\nv_lshl_add_u32 {vT0}, {vG}, 3, {vT0}\nv_mul_u32_u24 {vT0}, 20, {vT0}\nv_and_b32 {vT1}, 3, {vL}\nv_add_lshl_u32 {vT0}, {vT0}, {vT1}, 4")
    a(f"s_mul_i32 {s0}, {sP}, 5120\ns_add_u32 {s1}, {s0}, {L_Y + 639*16}\ns_add_u32 {s0}, {s0}, {L_Y - 16}")
    a(f"v_add_u32 {vT2}, {s0}, {vT0}\nv_mov_b32 {vT3}, 64\ns_mov_b32 exec_lo, 0")
    a(f"v_sub_u32 {vT2}, {s1}, {vT0}\nv_mov_b32 {vT3}, 0xffffffc0\ns_mov_b32 exec_lo, -1")
    for t in range(3):
        for h in range(2): a(f"v_mad_i32_i24 {adr[2*t+h]}, {vT3}, {20*h + t}, {vT2}")
    for t in (0, 2):
        for h in range(2):
            def bad(l):
                k1 = 4*t + (l & 3); k2 = 8*(l >> 4) + 4*h + ((l >> 2) & 3)
                ok = (k1 <= 10 and (k1, k2) != (0, 0)) if k2 < 16 else (1 <= k1 <= 9 or (k1, k2) == (0, 16))
                return not ok
            set_exec(a, lanemask(bad))
            a(f"v_mov_b32 {adr[2*t+h]}, {L_ZERO}")
    set_exec(a, FULL)
    vO, vY, vB0, vB1, v16, vE = V(), fG, fI, fD, ang, step
    a(f"s_mul_i32 {s0}, {sP}, {4*RS}\ns_lshl_b32 {s1}, {sH}, 6\ns_add_u32 {s0}, {s0}, {s1}")
    a(f"v_mul_u32_u24 {vO}, 144, {vI}\nv_lshl_add_u32 {vO}, {vG}, 4, {vO}\nv_add_u32 {vO}, {s0}, {vO}")
    a(f"v_lshrrev_b32 {vT0}, 2, {vL}\nv_lshlrev_b32 {vT2}, 10, {vT0}\nv_add_lshl_u32 {vY}, {vT2}, {vT1}, 4")
    a(f"s_mul_i32 {s1}, {sW}, {RS}\nv_mul_u32_u24 {vT0}, 144, {vT0}\nv_lshl_add_u32 {vT0}, {vT1}, 5, {vT0}\nv_add_u32 {vB0}, {s1}, {vT0}")
    a(f"v_bfe_u32 {vT0}, {vL}, 1, 2\nv_mul_u32_u24 {vT0}, {RS}, {vT0}\nv_mul_u32_u24 {vT2}, 144, {vG}\nv_bfe_u32 {vT3}, {vL}, 3, 1\nv_lshlrev_b32 {vT3}, 6, {vT3}")
    a(f"v_add3_u32 {vT0}, {vT0}, {vT2}, {vT3}\nv_and_b32 {vT2}, 1, {vL}\nv_lshl_add_u32 {vB1}, {vT2}, 5, {vT0}")
    a(f"v_lshlrev_b32 {v16}, 4, {vL}\nv_lshrrev_b32 {vT0}, 3, {vL}\nv_lshlrev_b32 {vT0}, 12, {vT0}\nv_and_b32 {vT2}, 7, {vL}\nv_add_lshl_u32 {vE}, {vT0}, {vT2}, 4")
    a(f"s_lshl_b32 {s0}, {sT}, 6\ns_lshl_b32 {s1}, {sW}, 18\ns_add_u32 {s0}, {s0}, {s1}\ns_add_u32 {s0}, {s0}, {WS_Y}\ns_lshl_b32 {s1}, {sW}, 10")
    a(f"s_lshl_b32 {s2_}, {sT}, 13\ns_add_u32 {s2_}, {s2_}, {s1}\ns_add_u32 {s2_}, {s2_}, {WS_S}\ns_add_u32 {s3_}, {s2_}, 4096")
    wait_ready()
    L = a.label("r2skip")
    for i in range(3):
        if i == 2: a(f"s_cmp_ge_u32 {sW}, 2\ns_cbranch_scc1 {L}")
        dma(a, f"s_add_u32 m0, {s1}, {L_Y + i*4096}", vY, rWS, s0, flag="sc1")
        if i < 2: a(f"s_add_u32 {s0}, {s0}, {1 << 20}")
    a(f"{L}:")
    a(f"s_lshl_b32 {s0}, {sT}, 8\ns_add_u32 {s0}, {s0}, {WS_SX}")
    a("s_waitcnt vmcnt(0) lgkmcnt(0)\ns_barrier")
    stamp(a, "y")
    if "rprio" in c.opt: a(f"s_setprio {c.opt['rprio']}")
    Ar, Ai = O[0:12], O[12:24]
    for t in range(3):
        for h in range(2): a(f"ds_read_b64_tr_b16 {Ar[4*t+2*h:4*t+2*h+2]}, {adr[2*t+h]}")
        for h in range(2): a(f"ds_read_b64_tr_b16 {Ai[4*t+2*h:4*t+2*h+2]}, {adr[2*t+h]} offset:8")
    Tr, Ti = V(12), V(12)
    for t in range(3):
        sl = slice(4*t, 4*t+4)
        a(f"s_waitcnt lgkmcnt({8-4*t})")
        mfma16(a, Tr[sl], Ar[sl], C, 0);       mfma16(a, Ti[sl], Ar[sl], S_, 0)
        mfma16(a, Tr[sl], Ai[sl], mS, Tr[sl]); mfma16(a, Ti[sl], Ai[sl], sC, Ti[sl])
    pend = []
    for r in range(4):
        for t in range(3):
            t0, t1 = (vT0, vT1) if t & 1 else (vT2, vT3)
            cmul(a, Tr[4*t+r], Ti[4*t+r], twr[4*t+r], twi[4*t+r], t0, t1)
            if pend: pend.pop(0)()
            cvtpk(a, A2[4*r+t], t0, t1)
        pend = [lambda r=r, nt=nt: mfma16(a, O[8*r+4*nt:8*r+4*nt+4], A2[4*r:4*r+4], M[4*nt:4*nt+4], 0) for nt in range(2)]
    for p in pend: p()
    for r in range(4): a(f"ds_write_b128 {vO}, {O[8*r:8*r+4]} offset:{L_O + r*RS}")
    set_exec(a, lanemask(lambda l: (l & 15) < 4))
    for r in range(4): a(f"ds_write_b128 {vO}, {O[8*r+4:8*r+8]} offset:{L_O + r*RS + 16*144}")
    set_exec(a, FULL)
    a("s_waitcnt lgkmcnt(0)\ns_barrier")
    L = a.label("r2x")
    for rd in range(2):
        if rd: a(f"s_cmp_lg_u32 {sW}, 3\ns_cbranch_scc1 {L}")
        Q = O[16*rd:16*rd+16]
        for p in range(2):
            for q in range(2): a(f"ds_read_b128 {Q[8*p+4*q:8*p+4*q+4]}, {vB1 if rd else vB0} offset:{L_O + p*4*RS + q*16 + rd*16*144}")
        a("s_waitcnt lgkmcnt(0)")
        o0, o1 = A2[8*rd:8*rd+4], A2[8*rd+4:8*rd+8]
        for k in range(4):
            a(f"v_add_f32 {vT0}, {Q[2*k]}, {Q[8+2*k]}\nv_add_f32 {vT1}, {Q[2*k+1]}, {Q[9+2*k]}")
            a(f"v_sub_f32 {vT2}, {Q[2*k]}, {Q[8+2*k]}\nv_sub_f32 {vT3}, {Q[2*k+1]}, {Q[9+2*k]}")
            cvtpk(a, o0[k], vT0, vT1); cvtpk(a, o1[k], vT2, vT3)
        if rd == 0:
            a(f"buffer_store_dwordx4 {o0}, {v16}, {rWS}, {s2_} offen {ST}")
            a(f"buffer_store_dwordx4 {o1}, {v16}, {rWS}, {s3_} offen {ST}")
        else:
            a(f"buffer_store_dwordx4 {o0}, {vE}, {rWS}, {s0} offen {ST}")
            a(f"buffer_store_dwordx4 {o1}, {vE}, {rWS}, {s0} offen offset:128 {ST}")
    a(f"{L}:")
    return sT
```

```python
import json, sys
from common import *
def spin(role, k, stat, nrec=1024, cyc=False):
    a = Asm()
    a(kernel_head("spin_kernel"))
    a("s_cmp_ge_u32 s2, 1\ns_cbranch_scc1 spin_end")
    a("s_load_dwordx2 s[4:5], s[0:1], 72\ns_waitcnt lgkmcnt(0)")
    a(f"s_mov_b32 s6, {WS_END}\ns_mov_b32 s7, 0x20000\nv_lshlrev_b32 v1, 6, v0")
    n = nrec // 64
    for i in range(16):
        a(f"s_mov_b32 s8, {WS_STAMP + i*4096}\nbuffer_load_dword v{8+i}, v1, s[4:7], s8 offen offset:{0 if cyc else 8}")
    for i in range(n):
        a(f"s_mov_b32 s8, {WS_STAMP + role*65536 + i*4096}\nbuffer_load_dword v{24+i}, v1, s[4:7], s8 offen offset:{8+4*k}")
        if cyc: a(f"buffer_load_dword v{40+i}, v1, s[4:7], s8 offen offset:8")
    a("s_waitcnt vmcnt(0)\nv_readfirstlane_b32 s9, v8\ns_sub_u32 s9, s9, 100000")
    for i in range(16 + (0 if cyc else n)): a(f"v_subrev_u32 v{8+i}, s9, v{8+i}")
    if cyc:
        for i in range(n): a(f"v_sub_u32 v{24+i}, v{24+i}, v{40+i}")
    for i in range(1, 16): a(f"v_min_u32 v8, v8, v{8+i}")
    op = {"max": "max", "mean": "add", "min": "min"}[stat]
    for i in range(1, n): a(f"v_{op}_u32 v24, v24, v{24+i}")
    a("v_readlane_b32 s10, v8, 0\nv_readlane_b32 s11, v24, 0")
    for l in range(1, 64):
        a(f"v_readlane_b32 s12, v8, {l}\nv_readlane_b32 s13, v24, {l}\ns_min_u32 s10, s10, s12\ns_{op}_u32 s11, s11, s13")
    if stat == "mean":
        a(f"s_mul_hi_u32 s11, s11, {(1 << 32)//nrec}")
    if cyc: a(f"s_mul_hi_u32 s11, s11, {(1 << 32)//10}\ns_add_u32 s11, s11, s10")
    a("s_add_u32 s11, s11, s9\ns_mov_b32 s14, 8000\nspin_loop:\ns_memrealtime s[12:13]\ns_waitcnt lgkmcnt(0)\ns_sub_u32 s12, s12, s11")
    a("s_sub_u32 s14, s14, 1\ns_cmp_eq_u32 s14, 0\ns_cbranch_scc1 spin_end\ns_cmp_lt_i32 s12, 10000\ns_cbranch_scc1 spin_loop\nspin_end:\ns_endpgm")
    return "\n".join(hazard.fix(a.lines)) + "\n"
def make(buildf, items, **opt):
    out = []
    for role, name, stat in items:
        fn = f"ro_{role}_{name}_{stat}.s"
        cyc = stat.startswith("c"); stat = stat[1:] if cyc else stat
        buildf(fn, stamps=True, as_list=True, real=not cyc, **opt)
        info = json.load(open(fn + ".json"))
        k = info[role][2].index(name)
        nrec = 640 if (role == 1 and name in ("go1", "z", "fft2", "arr1", "arr2", "drain1", "drain2")) else 1024
        s = open(fn).read()
        s = s.replace('.amdgcn_target', "; @launch kernel=spin_kernel grid=(1,1,1) block=(64,1,1) lds=0\n.amdgcn_target")
        s = s.replace('.section .rodata,"a"\n', spin(role, k, stat, nrec, cyc) + '.section .rodata,"a"\n' + kd("spin_kernel", 64, 32) + "\n")
        open(fn, "w").write(s); out.append(fn[len("code/"):])
    print(json.dumps(out))
if __name__ == "__main__":
    import k3
    make(k3.build, [tuple(int(x) if x.isdigit() else x for x in it.split(":")) for it in sys.argv[1:]])
```
